```python
import torch

def _softmax(x, axis=-1):
    return torch.softmax(x, dim=axis)
def _gelu(x):
    return torch.nn.functional.gelu(x, approximate="tanh")
def _silu(x):
    return torch.nn.functional.silu(x)
def _sigmoid(x):
    return torch.sigmoid(x)
def _layernorm(x, axis=-1, eps=1e-5):
    m = x.mean(dim=axis, keepdim=True)
    v = x.var(dim=axis, keepdim=True, unbiased=False)
    return (x - m) / torch.sqrt(v + eps)
def _scatter_add(tgt, idx, src, axis=0):
    return tgt.clone().index_add_(axis, idx, src)
def _segment_sum(src, seg, n):
    out = torch.zeros((n,) + src.shape[1:], dtype=src.dtype)
    return out.index_add_(0, seg, src)
def _pad(x, pw):
    flat = tuple(v for pair in reversed(pw) for v in pair)
    return torch.nn.functional.pad(x, flat)

kernel_name = 'gated_mix__mha_block__grouped_kv_mqa__prompt'

def setup_inputs():

    _w = (lambda a: (lambda t: t.to(torch.bfloat16) if t.is_floating_point() else t)(torch.as_tensor(a)))
    def _A_setup():
        B, S, D, H = 1, 2048, 640, 32
        return {
            "x": _w((lambda *s: torch.randn(*s, dtype=torch.bfloat16) * 0.1)(B, S, D)),
            "wqkv": _w((lambda *s: torch.randn(*s, dtype=torch.bfloat16) * 0.4)(D, 3 * D)),
            "wo": _w((lambda *s: torch.randn(*s, dtype=torch.bfloat16) * 0.2)(D, D)),
        }
    _A_in = _A_setup()

    def _B_setup():
        B, S, D, H = 1, 2048, 640, 32
        Dh = D // H
        return {
            "x": _w((lambda *s: torch.randn(*s, dtype=torch.bfloat16) * 0.1)(B, S, D)),
            "wq": _w((lambda *s: torch.randn(*s, dtype=torch.bfloat16) * 0.4)(D, H * Dh)),
            "wk": _w((lambda *s: torch.randn(*s, dtype=torch.bfloat16) * 0.4)(D, Dh)),
            "wv": _w((lambda *s: torch.randn(*s, dtype=torch.bfloat16) * 0.4)(D, Dh)),
            "wo": _w((lambda *s: torch.randn(*s, dtype=torch.bfloat16) * 0.4)(H * Dh, D)),
        }
    _B_in = _B_setup()

    return {
        "A_x": _A_in["x"],
        "A_wqkv": _A_in["wqkv"],
        "A_wo": _A_in["wo"],
        "B_x": _B_in["x"],
        "B_wq": _B_in["wq"],
        "B_wk": _B_in["wk"],
        "B_wv": _B_in["wv"],
        "B_wo": _B_in["wo"],
        "gate_w": _w((lambda *s: torch.randn(*s, dtype=torch.bfloat16) * 0.1)(640) * 16.0),
    }

def reference(A_x, A_wqkv, A_wo, B_x, B_wq, B_wk, B_wv, B_wo, gate_w):
    def _A_ref(x, wqkv, wo):
        B, S, D = x.shape
        H = 32
        Dh = D // H
        qkv = (lambda x, *d: x.permute(*d))((x @ wqkv).reshape(B, S, 3, H, Dh), 2, 0, 3, 1, 4)
        q, k, v = qkv[0], qkv[1], qkv[2]
        scores = torch.einsum("bhqd,bhkd->bhqk", q, k) * (Dh ** -0.5)
        p = _softmax(scores, axis=-1)
        o = torch.einsum("bhqk,bhkd->bhqd", p, v)
        return (lambda x, *d: x.permute(*d))(o, 0, 2, 1, 3).reshape(B, S, D) @ wo

    def _B_ref(x, wq, wk, wv, wo):
        B, S, D = x.shape
        H = 32
        Dh = D // H
        q = (lambda x, *d: x.permute(*d))((x @ wq).reshape(B, S, H, Dh), 0, 2, 1, 3)
        k = x @ wk
        v = x @ wv
        scores = torch.einsum("bhqd,bkd->bhqk", q, k) * (Dh ** -0.5)
        p = _softmax(scores, axis=-1)
        o = torch.einsum("bhqk,bkd->bhqd", p, v)
        return (lambda x, *d: x.permute(*d))(o, 0, 2, 1, 3).reshape(B, S, H * Dh) @ wo

    x = A_x
    g = _sigmoid((x * gate_w).sum(-1, keepdims=True))
    a = _A_ref(x, A_wqkv, A_wo)
    b = _B_ref(x, B_wq, B_wk, B_wv, B_wo)
    return g * a + (1 - g) * b
```

```python
import struct


def f2h(x):
    return "0x%08x" % struct.unpack("<I", struct.pack("<f", x))[0]


Q_HEAD_STRIDE = 64 * 1280
KV_HEAD_STRIDE = 65 * 2560
WS_Q = 0
WS_KV = 64 * Q_HEAD_STRIDE
WS_NQ = 0xA40000
WS_NK = 0xAC0000
WS_G = 0xB10000
WS_O = 0xC00000
WS_BYTES = 0x1200000

KA_X, KA_WQKV, KA_WOA, KA_BX, KA_WQB, KA_WKB, KA_WVB, KA_WOB, KA_GATE, KA_OUT, KA_DBG, KA_WS = [8 * i for i in range(12)]


class Asm:
    def __init__(self):
        self.lines = []

    def __call__(self, s):
        for ln in s.strip("\n").split("\n"):
            ln = ln.strip()
            if ln:
                self.lines.append(ln if ln.endswith(":") or ln.startswith(".") else "    " + ln)

    def c(self, s):
        self.lines.append("    ; " + s)

    def text(self):
        return "\n".join(self.lines) + "\n"


def vr(base, n=1):
    return f"v{base}" if n == 1 else f"v[{base}:{base + n - 1}]"


def ar(base, n=1):
    return f"a{base}" if n == 1 else f"a[{base}:{base + n - 1}]"


def sr(base, n=1):
    return f"s{base}" if n == 1 else f"s[{base}:{base + n - 1}]"


def srd(a, d, lo, hi, nbytes):
    a(f"s_mov_b32 s{d}, s{lo}")
    a(f"s_and_b32 s{d + 1}, s{hi}, 0xffff")
    a(f"s_mov_b32 s{d + 2}, {nbytes}")
    a(f"s_mov_b32 s{d + 3}, 0x00020000")


def kernel_header(a, name):
    a(f".globl {name}")
    a(".p2align 8")
    a(f".type {name},@function")
    a(f"{name}:")


def kernel_desc(a, name, nvgpr, nsgpr, accum):
    a(".p2align 6")
    a(f".amdhsa_kernel {name}")
    a(f"  .amdhsa_next_free_vgpr {nvgpr}")
    a(f"  .amdhsa_next_free_sgpr {nsgpr}")
    a(f"  .amdhsa_accum_offset {accum}")
    a("  .amdhsa_group_segment_fixed_size 0")
    a("  .amdhsa_kernarg_size 96")
    a("  .amdhsa_user_sgpr_count 2")
    a("  .amdhsa_user_sgpr_kernarg_segment_ptr 1")
    a("  .amdhsa_system_sgpr_workgroup_id_x 1")
    a(".end_amdhsa_kernel")


def interleave(main, extra, start=0, every=1):
    out = []
    ei = 0
    for i, m in enumerate(main):
        out.append(m)
        if i >= start and (i - start) % every == 0 and ei < len(extra):
            e = extra[ei]
            out.extend(e if isinstance(e, list) else [e])
            ei += 1
    while ei < len(extra):
        e = extra[ei]
        out.extend(e if isinstance(e, list) else [e])
        ei += 1
    return out
```

```python
import math
from common import *

NAME = "gmix_proj_kernel"
SLOT = 39424
NCHUNK = 10
LDS_BYTES = 4 * SLOT
QSCALE = (20 ** -0.5) * math.log2(math.e)

S_X, S_W, S_E, S_WS, S_GW = 20, 24, 28, 32, 36
sRB, sCB, sWV, sWR, sWC, sROT, sLDW = 40, 41, 42, 43, 44, 45, 46
sKX, sKW, sKE, sMX, sMW, sME = 47, 48, 49, 50, 51, 52
sEM = 54
sT0, sT1, sT2, sT3 = 56, 57, 58, 59
sDST, sHS, sTS, sSC, sNB = 60, 61, 62, 63, 64
sSG = 66
sLDW64 = 70
sGATE = 71
sQ16 = 72
sA, sB_, sC = 74, 75, 76

vLANE = 1
vX, vW, vE = 16, 20, 25
vXA, vWBm, vWBl, vWE = 26, 30, 32, 34
vG0, vG1 = 36, 37
vLm, vLl, vLn = 38, 39, 40
vVo = 41
SETS = [48, 88]
ACC = 128
ACCE = 208
GT = 212


def acc(i, jt):
    return ACC + (i * 5 + jt) * 4


def dma_chunk(c):
    so = (c % 4) * SLOT
    items = []
    for i in range(4):
        items.append([f"s_add_u32 m0, s{sMX}, {so + i * 1024}", "s_nop 0",
                      f"buffer_load_dwordx4 v{vX + i}, {sr(S_X, 4)}, s{sKX} offen lds"])
    for i in range(5):
        items.append([f"s_add_u32 m0, s{sMW}, {so + 16384 + i * 1024}", "s_nop 0",
                      f"buffer_load_dwordx4 v{vW + i}, {sr(S_W, 4)}, s{sKW} offen lds"])
    items.append([f"s_add_u32 m0, s{sME}, {so + 36864}", f"s_mov_b64 exec, {sr(sEM, 2)}",
                  f"buffer_load_dwordx4 v{vE}, {sr(S_E, 4)}, s{sKE} offen lds", "s_mov_b64 exec, -1",
                  f"s_add_u32 s{sKX}, s{sKX}, 128", f"s_add_u32 s{sKW}, s{sKW}, s{sLDW64}",
                  f"s_add_u32 s{sKE}, s{sKE}, 2560"])
    return items


def frag_reads(c, ks, st, vtype):
    sl = c % 4
    half = sl // 2
    rel = (sl % 2) * SLOT
    b = SETS[st]
    r = []
    for i in range(4):
        r.append(f"ds_read_b128 {vr(b + 4 * i, 4)}, v{vXA + 2 * ks + half} offset:{rel + i * 2048}")
    for jt in range(5):
        for jh in range(2):
            if vtype:
                reg, off = vWBm + half, 32 * jt
            elif jt < 4:
                reg, off = vWBm + half, 40 * jt
            else:
                reg, off = vWBl + half, 0
            r.append(f"ds_read_b64_tr_b16 {vr(b + 16 + 4 * jt + 2 * jh, 2)}, v{reg} offset:{rel + ks * 5120 + jh * 2560 + off}")
    for jh in range(2):
        r.append(f"ds_read_b64_tr_b16 {vr(b + 36 + 2 * jh, 2)}, v{vWE + half} offset:{rel + ks * 1280 + jh * 160}")
    return r


def mfmas(st, vtype):
    b = SETS[st]
    m = []
    for jt in range(5):
        for i in range(4):
            x, w = vr(b + 4 * i, 4), vr(b + 16 + 4 * jt, 4)
            A, B = (x, w) if vtype else (w, x)
            m.append(f"v_mfma_f32_16x16x32_bf16 {vr(acc(i, jt), 4)}, {A}, {B}, {vr(acc(i, jt), 4)}")
    x, w = vr(b, 4), vr(b + 36, 4)
    A, B = (x, w) if vtype else (w, x)
    m.append(f"v_mfma_f32_16x16x32_bf16 {vr(ACCE, 4)}, {A}, {B}, {vr(ACCE, 4)}")
    return m


def main_loop(a, vtype):
    a("s_waitcnt vmcnt(30)")
    a("s_barrier")
    for ln in frag_reads(0, 0, 0, vtype):
        a(ln)
    for c in range(NCHUNK):
        a.c(f"chunk {c} ks0")
        a("s_waitcnt lgkmcnt(0)")
        for ln in interleave(mfmas(0, vtype), frag_reads(c, 1, 1, vtype)):
            a(ln)
        a.c(f"chunk {c} ks1")
        if c + 1 < NCHUNK:
            out = min(NCHUNK - 1, c + 3) - (c + 1)
            a(f"s_waitcnt vmcnt({10 * out}) lgkmcnt(0)")
            a("s_barrier")
            rd = frag_reads(c + 1, 0, 0, vtype)
            extra = [[x] for x in rd]
            if c + 4 < NCHUNK:
                d = dma_chunk(c + 4)
                for k, it in enumerate(d):
                    idx = 10 + k
                    if idx < len(extra):
                        extra[idx] = extra[idx] + it
                    else:
                        extra.append(it)
            for ln in interleave(mfmas(1, vtype), extra):
                a(ln)
        else:
            a("s_waitcnt lgkmcnt(0)")
            for ln in mfmas(1, vtype):
                a(ln)
    a("s_nop 7")
    a("s_nop 3")


def gen(a):
    kernel_header(a, NAME)
    a(f"""
    s_cmp_ge_u32 s2, 256
    s_cbranch_scc1 L_k1_done
    s_load_dwordx4 s[4:7], s[0:1], {KA_X}
    s_load_dwordx4 s[8:11], s[0:1], {KA_WQB}
    s_load_dwordx2 s[12:13], s[0:1], {KA_WVB}
    s_load_dwordx2 s[14:15], s[0:1], {KA_GATE}
    s_load_dwordx2 s[16:17], s[0:1], {KA_WS}
    v_lshrrev_b32 v2, 6, v0
    v_and_b32 v{vLANE}, 63, v0
    s_and_b32 s{sT0}, s2, 7
    s_lshr_b32 s{sT1}, s2, 3
    v_readfirstlane_b32 s{sWV}, v2
    s_and_b32 s{sRB}, s{sT0}, 1
    s_lshl_b32 s{sRB}, s{sRB}, 3
    s_and_b32 s{sT2}, s{sT1}, 7
    s_add_u32 s{sRB}, s{sRB}, s{sT2}
    s_lshr_b32 s{sCB}, s{sT0}, 1
    s_lshl_b32 s{sCB}, s{sCB}, 2
    s_lshr_b32 s{sT2}, s{sT1}, 3
    s_add_u32 s{sCB}, s{sCB}, s{sT2}
    s_and_b32 s{sROT}, s{sCB}, 3
    s_lshr_b32 s{sWR}, s{sWV}, 1
    s_and_b32 s{sWC}, s{sWV}, 1
    s_mov_b32 s{sEM}, -1
    s_mov_b32 s{sEM + 1}, 0xff
    s_mov_b32 s{sQ16}, 0xffff
    s_mov_b32 s{sQ16 + 1}, 0
    s_lshl_b32 s{sMX}, s{sWV}, 12
    s_mul_i32 s{sMW}, s{sWV}, 5120
    s_mul_i32 s{sME}, s{sWV}, 640
    s_mov_b32 s{sKX}, 0
    s_mov_b32 s{sKW}, 0
    s_mov_b32 s{sKE}, 0
    """)
    for i in range(4):
        a(f"""
        s_add_u32 s{sT0}, s{sROT}, {i}
        s_and_b32 s{sT0}, s{sT0}, 3
        s_lshl_b32 s{sT1}, s{sWR}, 2
        s_add_u32 s{sSG + i}, s{sT0}, s{sT1}
        """)
    a("s_waitcnt lgkmcnt(0)")
    srd(a, S_X, 4, 5, 2048 * 1280)
    srd(a, S_WS, 16, 17, WS_BYTES)
    srd(a, S_GW, 14, 15, 1280)
    a(f"""
    s_cmp_lt_u32 s{sCB}, 12
    s_cselect_b32 s{S_W}, s6, s8
    s_cselect_b32 s{S_W + 1}, s7, s9
    s_mov_b32 s{S_W + 2}, {640 * 1280}
    s_cmov_b32 s{S_W + 2}, {640 * 3840}
    s_mov_b32 s{sLDW}, 1280
    s_cmov_b32 s{sLDW}, 3840
    s_cselect_b32 s{sT0}, 0, 12
    s_and_b32 s{S_W + 1}, s{S_W + 1}, 0xffff
    s_mov_b32 s{S_W + 3}, 0x00020000
    s_sub_u32 s{sT0}, s{sCB}, s{sT0}
    s_mul_i32 s{sT3}, s{sT0}, 320
    s_lshl_b32 s{sLDW64}, s{sLDW}, 6
    s_lshr_b32 s{sT0}, s{sCB}, 2
    s_cmp_eq_u32 s{sT0}, 2
    s_cselect_b32 s{S_E}, s12, s10
    s_cselect_b32 s{S_E + 1}, s13, s11
    s_and_b32 s{S_E + 1}, s{S_E + 1}, 0xffff
    s_mov_b32 s{S_E + 2}, 25600
    s_mov_b32 s{S_E + 3}, 0x00020000
    s_and_b32 s{sGATE}, s{sT0}, 1
    """)
    a.c("X DMA voffsets")
    a(f"""
    v_lshrrev_b32 v2, 3, v{vLANE}
    v_and_b32 v3, 7, v{vLANE}
    v_xor_b32 v3, v3, v2
    v_lshlrev_b32 v3, 4, v3
    v_mul_u32_u24 v2, 1280, v2
    v_add_u32 v2, v2, v3
    """)
    for ip in range(4):
        a(f"""
        s_cmp_eq_u32 s{sWC}, 0
        s_cselect_b32 s{sT0}, s{sSG + ip // 2}, s{sSG + 2 + ip // 2}
        s_lshl_b32 s{sT0}, s{sT0}, 4
        s_lshl_b32 s{sT1}, s{sRB}, 7
        s_add_u32 s{sT0}, s{sT0}, s{sT1}
        s_add_u32 s{sT0}, s{sT0}, {8 * (ip % 2)}
        s_mul_i32 s{sT0}, s{sT0}, 1280
        v_add_u32 v{vX + ip}, s{sT0}, v2
        """)
    a.c("W DMA voffsets")
    a(f"""
    s_mul_i32 s{sT0}, s{sWR}, 160
    s_add_u32 s{sT0}, s{sT0}, s{sT3}
    s_lshl_b32 s{sT1}, s{sWC}, 5
    s_mul_i32 s{sT1}, s{sT1}, s{sLDW}
    s_add_u32 s{sT0}, s{sT0}, s{sT1}
    """)
    for i in range(5):
        a(f"""
        v_add_u32 v2, {64 * i}, v{vLANE}
        v_mul_u32_u24 v3, 205, v2
        v_lshrrev_b32 v3, 11, v3
        v_mul_u32_u24 v4, 10, v3
        v_sub_u32 v4, v2, v4
        v_lshrrev_b32 v5, 4, v3
        v_lshlrev_b32 v5, 2, v5
        v_and_b32 v6, 3, v3
        v_add_u32 v5, v5, v6
        v_bfe_u32 v6, v3, 2, 2
        v_lshlrev_b32 v6, 3, v6
        v_add_u32 v5, v5, v6
        v_mul_lo_u32 v5, v5, s{sLDW}
        v_lshlrev_b32 v4, 4, v4
        v_add3_u32 v{vW + i}, v5, v4, s{sT0}
        """)
    a(f"""
    v_lshlrev_b32 v{vE}, 4, v{vLANE}
    v_add_u32 v{vE}, s{sME}, v{vE}
    """)
    a.c("gate loads (some WGs)")
    a(f"""
    s_cmp_eq_u32 s{sGATE}, 0
    s_cbranch_scc1 L_k1_nogl
    s_lshr_b32 s{sT0}, s{sCB}, 3
    s_lshl_b32 s{sT0}, s{sT0}, 2
    s_add_u32 s{sT0}, s{sT0}, s{sROT}
    s_lshl_b32 s{sT0}, s{sT0}, 4
    s_lshl_b32 s{sT1}, s{sRB}, 7
    s_add_u32 s{sT0}, s{sT0}, s{sT1}
    s_lshl_b32 s{sT1}, s{sWV}, 2
    s_add_u32 s{sT0}, s{sT0}, s{sT1}
    v_lshrrev_b32 v2, 4, v{vLANE}
    v_add_u32 v{vG1}, s{sT0}, v2
    v_and_b32 v3, 15, v{vLANE}
    v_mul_u32_u24 v3, 80, v3
    v_mul_u32_u24 v2, 1280, v{vG1}
    v_add_u32 v2, v2, v3
    """)
    for i in range(5):
        a(f"buffer_load_dwordx4 {vr(GT + 4 * i, 4)}, v2, {sr(S_X, 4)}, 0 offen offset:{16 * i}")
        a(f"buffer_load_dwordx4 {vr(GT + 20 + 4 * i, 4)}, v3, {sr(S_GW, 4)}, 0 offen offset:{16 * i}")
    a("L_k1_nogl:")
    a.c("issue first 4 chunks")
    for c in range(4):
        for it in dma_chunk(c):
            for ln in it:
                a(ln)
    a.c("fragment read addresses")
    a(f"""
    v_and_b32 v2, 15, v{vLANE}
    v_lshrrev_b32 v3, 4, v{vLANE}
    v_and_b32 v4, 7, v{vLANE}
    v_xor_b32 v4, v4, v3
    v_lshlrev_b32 v4, 4, v4
    v_lshlrev_b32 v5, 7, v2
    s_lshl_b32 s{sT0}, s{sWR}, 13
    v_add3_u32 v{vXA}, v5, v4, s{sT0}
    v_add_u32 v{vXA + 1}, {2 * SLOT}, v{vXA}
    v_xor_b32 v{vXA + 2}, 64, v{vXA}
    v_add_u32 v{vXA + 3}, {2 * SLOT}, v{vXA + 2}
    v_lshrrev_b32 v4, 2, v2
    v_and_b32 v5, 3, v{vLANE}
    v_lshlrev_b32 v6, 2, v3
    v_add_u32 v6, v6, v4
    v_mul_u32_u24 v6, 160, v6
    s_mul_i32 s{sT0}, s{sWC}, 10240
    s_add_u32 s{sT0}, s{sT0}, 16384
    v_add_u32 v6, s{sT0}, v6
    v_lshlrev_b32 v7, 3, v5
    v_add_u32 v{vWBm}, v6, v7
    v_add_u32 v{vWBm + 1}, {2 * SLOT}, v{vWBm}
    v_mul_u32_u24 v8, 40, v5
    v_add3_u32 v{vWBl}, v6, v8, 32
    v_add_u32 v{vWBl + 1}, {2 * SLOT}, v{vWBl}
    v_lshlrev_b32 v6, 3, v3
    v_add_u32 v6, v6, v4
    v_mul_u32_u24 v6, 40, v6
    v_mov_b32 v8, 32
    s_cmp_eq_u32 s{sWC}, 0
    s_cselect_b64 vcc, -1, 0
    v_add_u32 v6, 36864, v6
    v_cndmask_b32 v7, v8, v7, vcc
    v_add_u32 v{vWE}, v6, v7
    v_add_u32 v{vWE + 1}, {2 * SLOT}, v{vWE}
    """)
    a.c("zero accumulators")
    for r in range(ACC, ACCE + 4):
        a(f"v_mov_b32 v{r}, 0")
    a.c("gate math")
    a(f"""
    s_cmp_eq_u32 s{sGATE}, 0
    s_cbranch_scc1 L_k1_nogm
    s_waitcnt vmcnt(40)
    v_mov_b32 v2, 0
    v_mov_b32 v3, 0
    """)
    for i in range(20):
        x, g = GT + i, GT + 20 + i
        a(f"""
        v_lshlrev_b32 v4, 16, v{x}
        v_lshlrev_b32 v5, 16, v{g}
        v_and_b32 v6, 0xffff0000, v{x}
        v_and_b32 v7, 0xffff0000, v{g}
        v_mul_f32 v4, v4, v5
        v_mul_f32 v6, v6, v7
        v_cvt_pk_bf16_f32 v4, v4, v6
        v_lshlrev_b32 v5, 16, v4
        v_and_b32 v6, 0xffff0000, v4
        v_add_f32 v2, v2, v5
        v_add_f32 v3, v3, v6
        """)
    a("v_add_f32 v2, v2, v3")
    for k in (8, 4, 2, 1):
        a("s_nop 1")
        a(f"v_add_f32_dpp v2, v2, v2 row_ror:{k} row_mask:0xf bank_mask:0xf")
    a(f"""
    v_cvt_pk_bf16_f32 v2, v2, v2
    v_lshlrev_b32 v2, 16, v2
    v_mul_f32 v2, {f2h(-math.log2(math.e))}, v2
    v_exp_f32 v2, v2
    s_nop 0
    v_add_f32 v2, 1.0, v2
    v_rcp_f32 v2, v2
    s_nop 0
    v_cvt_pk_bf16_f32 v2, v2, v2
    v_lshlrev_b32 v{vG0}, 16, v2
    L_k1_nogm:
    s_lshr_b32 s{sT0}, s{sCB}, 2
    s_cmp_eq_u32 s{sT0}, 2
    s_cbranch_scc1 L_k1_vtype
    """)
    main_loop(a, False)
    a.c("QK epilogue")
    a(f"""
    s_lshr_b32 s{sT0}, s{sCB}, 2
    s_cmp_eq_u32 s{sT0}, 1
    s_mov_b32 s{sHS}, {Q_HEAD_STRIDE}
    s_cmov_b32 s{sHS}, {KV_HEAD_STRIDE}
    s_mov_b32 s{sTS}, 1280
    s_cmov_b32 s{sTS}, 2560
    s_cselect_b32 s{sSC}, 1.0, {f2h(QSCALE)}
    s_cselect_b32 s{sDST}, {WS_KV}, {WS_Q}
    s_mov_b32 s{sNB}, {WS_NQ}
    s_cmov_b32 s{sNB}, {WS_NK}
    s_lshl_b32 s{sT1}, s{sROT}, 3
    s_cmp_eq_u32 s{sT0}, 3
    s_cselect_b32 s{sT2}, 32, 0
    s_add_u32 s{sT1}, s{sT1}, s{sT2}
    s_lshl_b32 s{sT2}, s{sWC}, 2
    s_add_u32 s{sT1}, s{sT1}, s{sT2}
    s_mul_i32 s{sT2}, s{sT1}, s{sHS}
    s_add_u32 s{sDST}, s{sDST}, s{sT2}
    s_lshl_b32 s{sT2}, s{sT1}, 13
    s_add_u32 s{sNB}, s{sNB}, s{sT2}
    v_and_b32 v2, 15, v{vLANE}
    v_lshrrev_b32 v3, 4, v{vLANE}
    v_lshrrev_b32 v4, 1, v3
    v_lshlrev_b32 v4, 9, v4
    v_and_b32 v5, 1, v3
    v_lshlrev_b32 v5, 3, v5
    v_lshlrev_b32 v6, 4, v2
    v_add3_u32 v{vLm}, v4, v5, v6
    v_mul_lo_u32 v4, v3, s{sHS}
    v_lshlrev_b32 v5, 3, v2
    v_add_u32 v{vLl}, v4, v5
    v_lshlrev_b32 v4, 13, v3
    v_lshlrev_b32 v5, 2, v2
    v_add_u32 v{vLn}, v4, v5
    """)
    for i in range(4):
        a(f"""
        s_lshr_b32 s{sT0}, s{sSG + i}, 1
        s_lshl_b32 s{sT1}, s{sRB}, 2
        s_add_u32 s{sT0}, s{sT0}, s{sT1}
        s_mul_i32 s{sT0}, s{sT0}, s{sTS}
        s_add_u32 s{sT0}, s{sT0}, s{sDST}
        s_and_b32 s{sT1}, s{sSG + i}, 1
        s_lshl_b32 s{sT2}, s{sT1}, 8
        s_add_u32 s{sA}, s{sT0}, s{sT2}
        s_lshl_b32 s{sT2}, s{sT1}, 7
        s_add_u32 s{sB_}, s{sT0}, s{sT2}
        s_add_u32 s{sB_}, s{sB_}, 1024
        s_lshl_b32 s{sT2}, s{sRB}, 7
        s_lshl_b32 s{sT3}, s{sSG + i}, 4
        s_add_u32 s{sT2}, s{sT2}, s{sT3}
        s_lshl_b32 s{sT2}, s{sT2}, 2
        s_add_u32 s{sC}, s{sT2}, s{sNB}
        """)
        for jt in range(5):
            b = acc(i, jt)
            for r in range(4):
                a(f"v_mul_f32 v{b + r}, s{sSC}, v{b + r}")
            a(f"v_mul_f32 v{2 + jt}, v{b}, v{b}")
            for r in range(1, 4):
                a(f"v_fmac_f32 v{2 + jt}, v{b + r}, v{b + r}")
            a(f"v_cvt_pk_bf16_f32 v{b}, v{b}, v{b + 1}")
            a(f"v_cvt_pk_bf16_f32 v{b + 1}, v{b + 2}, v{b + 3}")
            if jt < 4:
                a(f"buffer_store_dwordx2 {vr(b, 2)}, v{vLm}, {sr(S_WS, 4)}, s{sA} offen")
                if jt < 3:
                    a(f"s_add_u32 s{sA}, s{sA}, s{sHS}")
            else:
                a(f"buffer_store_dwordx2 {vr(b, 2)}, v{vLl}, {sr(S_WS, 4)}, s{sB_} offen")
        a(f"""
        v_permlane16_swap_b32 v2, v3
        v_permlane16_swap_b32 v4, v5
        v_add_f32 v2, v2, v3
        v_add_f32 v4, v4, v5
        s_nop 1
        v_permlane32_swap_b32 v2, v4
        v_add_f32 v2, v2, v4
        v_add_f32 v{8 + i}, v2, v6
        buffer_store_dword v{8 + i}, v{vLn}, {sr(S_WS, 4)}, s{sC} offen
        """)
    a.c("K_B extra tile (cb<4)")
    KB = WS_KV + 32 * KV_HEAD_STRIDE
    b = ACCE
    a(f"""
    s_cmp_ge_u32 s{sCB}, 4
    s_cbranch_scc1 L_k1_tail
    s_lshr_b32 s{sT0}, s{sSG}, 1
    s_lshl_b32 s{sT1}, s{sRB}, 2
    s_add_u32 s{sT0}, s{sT0}, s{sT1}
    s_mul_i32 s{sT0}, s{sT0}, 2560
    s_add_u32 s{sT0}, s{sT0}, {KB}
    s_and_b32 s{sT1}, s{sSG}, 1
    s_lshl_b32 s{sT2}, s{sT1}, 8
    s_add_u32 s{sA}, s{sT0}, s{sT2}
    s_lshl_b32 s{sT2}, s{sT1}, 7
    s_add_u32 s{sB_}, s{sT0}, s{sT2}
    s_add_u32 s{sB_}, s{sB_}, 1024
    s_lshl_b32 s{sT2}, s{sRB}, 7
    s_lshl_b32 s{sT3}, s{sSG}, 4
    s_add_u32 s{sT2}, s{sT2}, s{sT3}
    s_lshl_b32 s{sT2}, s{sT2}, 2
    s_add_u32 s{sC}, s{sT2}, {WS_NK + 32 * 8192}
    v_mul_f32 v2, v{b}, v{b}
    v_fmac_f32 v2, v{b + 1}, v{b + 1}
    v_fmac_f32 v2, v{b + 2}, v{b + 2}
    v_fmac_f32 v2, v{b + 3}, v{b + 3}
    v_cvt_pk_bf16_f32 v{b}, v{b}, v{b + 1}
    v_cvt_pk_bf16_f32 v{b + 1}, v{b + 2}, v{b + 3}
    s_cmp_eq_u32 s{sWC}, 1
    s_cbranch_scc1 L_k1_kb1
    buffer_store_dwordx2 {vr(b, 2)}, v{vLm}, {sr(S_WS, 4)}, s{sA} offen
    v_mov_b32 v3, v2
    s_nop 1
    v_permlane16_swap_b32 v2, v3
    v_add_f32 v2, v2, v3
    v_mov_b32 v3, v2
    s_nop 1
    v_permlane32_swap_b32 v2, v3
    v_add_f32 v2, v2, v3
    s_mov_b64 exec, {sr(sQ16, 2)}
    buffer_store_dword v2, v{vLn}, {sr(S_WS, 4)}, s{sC} offen
    s_mov_b64 exec, -1
    s_branch L_k1_tail
    L_k1_kb1:
    s_add_u32 s{sC}, s{sC}, 8192
    s_mov_b64 exec, {sr(sQ16, 2)}
    buffer_store_dwordx2 {vr(b, 2)}, v{vLl}, {sr(S_WS, 4)}, s{sB_} offen
    buffer_store_dword v2, v{vLn}, {sr(S_WS, 4)}, s{sC} offen
    s_mov_b64 exec, -1
    L_k1_tail:
    s_cmp_eq_u32 s{sGATE}, 0
    s_cbranch_scc1 L_k1_done
    v_sub_f32 v2, 1.0, v{vG0}
    v_cvt_pk_bf16_f32 v2, v2, v2
    v_lshlrev_b32 v2, 16, v2
    v_lshlrev_b32 v3, 2, v{vG1}
    v_and_b32 v4, 15, v{vLANE}
    v_cmp_eq_u32 vcc, 0, v4
    s_mov_b32 s{sT0}, {WS_G}
    s_mov_b32 s{sT1}, {WS_G + 8192}
    s_and_saveexec_b64 s[78:79], vcc
    buffer_store_dword v{vG0}, v3, {sr(S_WS, 4)}, s{sT0} offen
    buffer_store_dword v2, v3, {sr(S_WS, 4)}, s{sT1} offen
    s_endpgm
    """)
    a("L_k1_vtype:")
    main_loop(a, True)
    a.c("V epilogue")
    a(f"""
    v_and_b32 v2, 15, v{vLANE}
    v_lshrrev_b32 v3, 4, v{vLANE}
    v_and_b32 v4, 1, v3
    v_mul_u32_u24 v4, 320, v4
    v_lshrrev_b32 v5, 1, v3
    v_lshlrev_b32 v5, 3, v5
    v_add_u32 v4, v4, v5
    s_mov_b32 s{sHS}, {KV_HEAD_STRIDE}
    """)
    for jt in range(5):
        a(f"""
        v_add_u32 v5, {16 * jt}, v2
        v_mul_u32_u24 v6, 205, v5
        v_lshrrev_b32 v6, 12, v6
        v_mul_u32_u24 v7, 20, v6
        v_sub_u32 v7, v5, v7
        v_mul_lo_u32 v6, v6, s{sHS}
        v_lshlrev_b32 v7, 4, v7
        v_add3_u32 v{vVo + jt}, v6, v7, v4
        """)
    a(f"""
    s_lshl_b32 s{sT1}, s{sROT}, 3
    s_lshl_b32 s{sT2}, s{sWC}, 2
    s_add_u32 s{sT1}, s{sT1}, s{sT2}
    s_mul_i32 s{sDST}, s{sT1}, s{sHS}
    s_add_u32 s{sDST}, s{sDST}, {WS_KV + 2560 + 1280}
    """)
    for i in range(4):
        a(f"""
        s_lshr_b32 s{sT0}, s{sSG + i}, 1
        s_lshl_b32 s{sT1}, s{sRB}, 2
        s_add_u32 s{sT0}, s{sT0}, s{sT1}
        s_mul_i32 s{sT0}, s{sT0}, 2560
        s_and_b32 s{sT1}, s{sSG + i}, 1
        s_mul_i32 s{sT1}, s{sT1}, 640
        s_add_u32 s{sT0}, s{sT0}, s{sT1}
        s_add_u32 s{sA}, s{sT0}, s{sDST}
        """)
        if i == 0:
            a(f"s_add_u32 s{sB_}, s{sT0}, {WS_KV + 32 * KV_HEAD_STRIDE + 2560 + 1280}")
        for jt in range(5):
            b = acc(i, jt)
            a(f"v_cvt_pk_bf16_f32 v{b}, v{b}, v{b + 1}")
            a(f"v_cvt_pk_bf16_f32 v{b + 1}, v{b + 2}, v{b + 3}")
            a(f"buffer_store_dwordx2 {vr(b, 2)}, v{vVo + jt}, {sr(S_WS, 4)}, s{sA} offen")
    b = ACCE
    a(f"""
    s_lshl_b32 s{sT0}, s{sWC}, 4
    v_add_u32 v5, s{sT0}, v2
    v_cmp_gt_u32 vcc, 20, v5
    v_lshlrev_b32 v5, 4, v5
    v_add_u32 v5, v5, v4
    v_cvt_pk_bf16_f32 v{b}, v{b}, v{b + 1}
    v_cvt_pk_bf16_f32 v{b + 1}, v{b + 2}, v{b + 3}
    s_and_saveexec_b64 s[78:79], vcc
    buffer_store_dwordx2 {vr(b, 2)}, v5, {sr(S_WS, 4)}, s{sB_} offen
    L_k1_done:
    s_endpgm
    """)


def desc(a):
    kernel_desc(a, NAME, 256, 96, 256)
```

```python
import math
from common import *

NAME = "gmix_attn_kernel"
TPS = 16
NST = 64 // TPS
STAGE = TPS * 2560
LDS_FLAG = 2 * STAGE
LDS_BYTES = 2 * STAGE + 256
DPW = STAGE // 1024 // 8
THR = 2.0 ** -40

S_WS = 8
sWV, sBR, sKV, sQH, sQT = 12, 13, 14, 15, 16
sT0, sT1, sT2, sT3 = 17, 18, 19, 20
sVM = 22
sLO = 24
sST, sDM, sDS, sDELTA, sRETRY = 26, 27, 28, 29, 30
sQ0, sQ1 = 31, 32
sKO = 33

vLANE = 1
vK0A, vK1A, vVA, vDMA = 2, 3, 4, 5
vQN = 6
vG = 8
vT = 10
Q = [16, 24]
F = [32, 48]
P = [64, 72]
M = [80, 96]
O = [112, 128]
S = [144, 160]
NV = 176


def qk(u, fs):
    f = F[fs]
    return [f"v_mfma_f32_32x32x16_bf16 {vr(S[u], 16)}, {vr(f, 4)}, {vr(Q[u], 4)}, {vr(M[u], 16)}",
            f"v_mfma_f32_32x32x8_bf16 {vr(S[u], 16)}, {vr(f + 4, 2)}, {vr(Q[u] + 4, 2)}, {vr(S[u], 16)}"]


def pv(u, fs):
    f = F[fs]
    return [f"v_mfma_f32_32x32x16_bf16 {vr(O[u], 16)}, {vr(f + 8, 4)}, {vr(P[u], 4)}, {vr(O[u], 16)}",
            f"v_mfma_f32_32x32x16_bf16 {vr(O[u], 16)}, {vr(f + 12, 4)}, {vr(P[u] + 4, 4)}, {vr(O[u], 16)}"]


def freads(fs, off):
    f = F[fs]
    return [[f"ds_read_b128 {vr(f, 4)}, v{vK0A} offset:{off}",
             f"ds_read_b64 {vr(f + 4, 2)}, v{vK1A} offset:{off}"],
            [f"s_mov_b64 exec, {sr(sVM, 2)}",
             f"ds_read_b128 {vr(f + 8, 4)}, v{vVA} offset:{off}",
             f"ds_read_b128 {vr(f + 12, 4)}, v{vVA} offset:{off + 640}",
             "s_mov_b64 exec, -1"]]


def slot(a, ue, um, fs, extras):
    mm = qk(um, fs) + pv(um, fs)
    for j in range(4):
        a(mm[j])
        if j < len(extras):
            for ln in extras[j]:
                a(ln)
        for r in range(4):
            a(f"v_exp_f32 v{S[ue] + 4 * j + r}, v{S[ue] + 4 * j + r}")
        for r in range(2):
            a(f"v_cvt_pk_bf16_f32 v{P[ue] + 2 * j + r}, v{S[ue] + 4 * j + 2 * r}, v{S[ue] + 4 * j + 2 * r + 1}")


def dma_stage(a):
    for i in range(DPW):
        a(f"s_add_u32 m0, s{sDM}, {i * 1024}")
        if i:
            a(f"s_add_u32 s{sT0}, s{sDS}, {i * 1024}")
        else:
            a(f"s_mov_b32 s{sT0}, s{sDS}")
        a(f"buffer_load_dwordx4 v{vDMA}, {sr(S_WS, 4)}, s{sT0} offen lds")
    a(f"s_add_u32 s{sDS}, s{sDS}, {STAGE}")
    a(f"s_xor_b32 s{sDM}, s{sDM}, s{sKO}")


def gen(a):
    kernel_header(a, NAME)
    a(f"""
    s_cmp_ge_u32 s2, 256
    s_cbranch_scc1 L_k2_done
    s_load_dwordx2 s[4:5], s[0:1], {KA_WS}
    v_lshrrev_b32 v{vT}, 6, v0
    v_and_b32 v{vLANE}, 63, v0
    s_and_b32 s{sT0}, s2, 7
    s_bfe_u32 s{sT1}, s2, 0x40003
    v_readfirstlane_b32 s{sWV}, v{vT}
    s_lshr_b32 s{sBR}, s2, 7
    s_lshl_b32 s{sT0}, s{sT0}, 2
    s_lshr_b32 s{sT2}, s{sT1}, 2
    s_add_u32 s{sT0}, s{sT0}, s{sT2}
    s_and_b32 s{sT1}, s{sT1}, 3
    s_lshl_b32 s{sT2}, s{sBR}, 5
    s_add_u32 s{sQH}, s{sT0}, s{sT2}
    s_cmp_eq_u32 s{sBR}, 0
    s_cselect_b32 s{sT3}, s{sT0}, 32
    s_mul_i32 s{sKV}, s{sT3}, {KV_HEAD_STRIDE}
    s_add_u32 s{sKV}, s{sKV}, {WS_KV}
    s_lshl_b32 s{sQT}, s{sT1}, 4
    s_lshl_b32 s{sT0}, s{sWV}, 1
    s_add_u32 s{sQT}, s{sQT}, s{sT0}
    s_mov_b32 s{sVM}, 0xfffff
    s_mov_b32 s{sVM + 1}, 0xfffff
    s_mov_b32 s{sLO}, -1
    s_mov_b32 s{sLO + 1}, 0
    s_mov_b32 s{sRETRY}, 0
    s_mul_i32 s{sQ0}, s{sQH}, {Q_HEAD_STRIDE}
    s_mul_i32 s{sT0}, s{sQT}, 1280
    s_add_u32 s{sQ0}, s{sQ0}, s{sT0}
    s_add_u32 s{sQ0}, s{sQ0}, {WS_Q}
    s_add_u32 s{sQ1}, s{sQ0}, 1280
    v_lshlrev_b32 v{vDMA}, 4, v{vLANE}
    v_and_b32 v{vT}, 31, v{vLANE}
    v_lshlrev_b32 v{vT + 1}, 3, v{vT}
    v_add_u32 v{vT + 1}, 1024, v{vT + 1}
    v_lshlrev_b32 v{vT + 2}, 2, v{vT}
    v_mov_b32 v{Q[0] + 4}, 0
    v_mov_b32 v{Q[0] + 5}, 0
    v_mov_b32 v{Q[1] + 4}, 0
    v_mov_b32 v{Q[1] + 5}, 0
    s_waitcnt lgkmcnt(0)
    """)
    srd(a, S_WS, 4, 5, WS_BYTES)
    a.c("norm loads: k norms into S regs (32+32), q norms, gate, Q frags")
    a(f"""
    s_lshl_b32 s{sT0}, s{sT3}, 13
    s_add_u32 s{sT0}, s{sT0}, {WS_NK}
    s_add_u32 s{sT1}, s{sT0}, 4096
    """)
    for i in range(8):
        a(f"buffer_load_dwordx4 {vr(S[0] + 4 * i, 4)}, v{vDMA}, {sr(S_WS, 4)}, s{sT0 if i < 4 else sT1} offen offset:{(i % 4) * 1024}")
    a(f"""
    s_cmp_eq_u32 s{sBR}, 0
    s_cbranch_scc1 L_k2_non2
    s_add_u32 s{sT0}, s{sT0}, 8192
    s_add_u32 s{sT1}, s{sT1}, 8192
    """)
    for i in range(8):
        a(f"buffer_load_dwordx4 {vr(O[0] + 4 * i, 4)}, v{vDMA}, {sr(S_WS, 4)}, s{sT0 if i < 4 else sT1} offen offset:{(i % 4) * 1024}")
    a(f"""
    L_k2_non2:
    s_lshl_b32 s{sT0}, s{sQH}, 13
    s_lshl_b32 s{sT1}, s{sQT}, 7
    s_add_u32 s{sT0}, s{sT0}, s{sT1}
    s_add_u32 s{sT0}, s{sT0}, {WS_NQ}
    buffer_load_dword v{vQN}, v{vT + 2}, {sr(S_WS, 4)}, s{sT0} offen
    buffer_load_dword v{vQN + 1}, v{vT + 2}, {sr(S_WS, 4)}, s{sT0} offen offset:128
    s_lshl_b32 s{sT0}, s{sBR}, 13
    s_add_u32 s{sT0}, s{sT0}, s{sT1}
    s_add_u32 s{sT0}, s{sT0}, {WS_G}
    buffer_load_dword v{vG}, v{vT + 2}, {sr(S_WS, 4)}, s{sT0} offen
    buffer_load_dword v{vG + 1}, v{vT + 2}, {sr(S_WS, 4)}, s{sT0} offen offset:128
    buffer_load_dwordx4 {vr(Q[0], 4)}, v{vDMA}, {sr(S_WS, 4)}, s{sQ0} offen
    buffer_load_dwordx4 {vr(Q[1], 4)}, v{vDMA}, {sr(S_WS, 4)}, s{sQ1} offen
    s_mov_b64 exec, {sr(sLO, 2)}
    buffer_load_dwordx2 {vr(Q[0] + 4, 2)}, v{vT + 1}, {sr(S_WS, 4)}, s{sQ0} offen
    buffer_load_dwordx2 {vr(Q[1] + 4, 2)}, v{vT + 1}, {sr(S_WS, 4)}, s{sQ1} offen
    s_mov_b64 exec, -1
    L_k2_restart:
    buffer_load_dwordx4 {vr(F[1], 4)}, v{vDMA}, {sr(S_WS, 4)}, s{sKV} offen
    buffer_load_dwordx2 {vr(F[1] + 4, 2)}, v{vT + 1}, {sr(S_WS, 4)}, s{sKV} offen
    s_mul_i32 s{sDM}, s{sWV}, {DPW * 1024}
    s_add_u32 s{sDS}, s{sKV}, s{sDM}
    s_add_u32 s{sDS}, s{sDS}, 2560
    s_add_u32 s{sKO}, s{sDM}, {STAGE}
    s_xor_b32 s{sKO}, s{sKO}, s{sDM}
    """)
    dma_stage(a)
    dma_stage(a)
    a.c("LDS read addresses")
    a(f"""
    v_lshlrev_b32 v{vK0A}, 4, v{vLANE}
    v_mov_b32 v{vK1A}, v{vT + 1}
    v_lshrrev_b32 v{vT + 3}, 5, v{vLANE}
    v_mul_u32_u24 v{vT + 3}, 320, v{vT + 3}
    v_lshlrev_b32 v{vVA}, 4, v{vT}
    v_add_u32 v{vVA}, v{vVA}, v{vT + 3}
    v_add_u32 v{vVA}, 1280, v{vVA}
    s_mov_b32 s{sDELTA}, {STAGE}
    s_mov_b32 s{sST}, 0
    v_cmp_eq_u32 vcc, 20, v{vT}
    v_mov_b32 v{vT + 3}, 0x3f803f80
    s_nop 0
    v_cndmask_b32 v{vT + 3}, 0, v{vT + 3}, vcc
    """)
    for fs in range(2):
        for r in range(8):
            a(f"v_mov_b32 v{F[fs] + 8 + r}, v{vT + 3}")
    for r in range(8):
        a(f"v_mov_b32 v{P[1] + r}, 0")
    a(f"""
    s_cmp_lg_u32 s{sRETRY}, 0
    s_cbranch_scc1 L_k2_havem
    s_waitcnt vmcnt({2 * DPW + 2 + 8})
    s_cmp_eq_u32 s{sBR}, 0
    s_cbranch_scc1 L_k2_non3
    """)
    for i in range(32):
        a(f"v_add_f32 v{S[0] + i}, v{S[0] + i}, v{O[0] + i}")
    a("L_k2_non3:")
    for i in range(0, 30, 2):
        a(f"v_max3_f32 v{S[0] + 31}, v{S[0] + i}, v{S[0] + i + 1}, v{S[0] + 31}")
    a(f"v_max_f32 v{vT + 3}, v{S[0] + 30}, v{S[0] + 31}")
    for k in (8, 4, 2, 1):
        a("s_nop 1")
        a(f"v_max_f32_dpp v{vT + 3}, v{vT + 3}, v{vT + 3} row_ror:{k} row_mask:0xf bank_mask:0xf")
    a(f"""
    v_mov_b32 v{vT + 4}, v{vT + 3}
    s_nop 1
    v_permlane16_swap_b32 v{vT + 3}, v{vT + 4}
    v_max_f32 v{vT + 3}, v{vT + 3}, v{vT + 4}
    v_mov_b32 v{vT + 4}, v{vT + 3}
    s_nop 1
    v_permlane32_swap_b32 v{vT + 3}, v{vT + 4}
    v_max_f32 v{vT + 3}, v{vT + 3}, v{vT + 4}
    s_waitcnt vmcnt({2 * DPW + 2 + 6})
    v_mul_f32 v{vQN}, v{vQN}, v{vT + 3}
    v_mul_f32 v{vQN + 1}, v{vQN + 1}, v{vT + 3}
    v_sqrt_f32 v{vQN}, v{vQN}
    v_sqrt_f32 v{vQN + 1}, v{vQN + 1}
    s_nop 0
    L_k2_havem:
    """)
    for u in range(2):
        for r in range(16):
            a(f"v_sub_f32 v{M[u] + r}, 0, v{vQN + u}")
        for r in range(16):
            a(f"v_mov_b32 v{O[u] + r}, 0")
    a(f"s_waitcnt vmcnt({2 * DPW})")
    for ln in qk(0, 1):
        a(ln)
    a(f"s_waitcnt vmcnt({DPW})")
    a("s_barrier")
    for grp in freads(0, 0):
        for ln in grp:
            a(ln)
    a("s_nop 7")
    a(".p2align 6")
    a("L_k2_stage:")
    for tt in range(TPS):
        fprev, fcur = (tt + 1) % 2, tt % 2
        a.c(f"tile {tt} slot1")
        slot(a, 0, 1, fprev, [])
        a.c(f"tile {tt} slot2")
        if tt < TPS - 1:
            a("s_waitcnt lgkmcnt(0)")
            slot(a, 1, 0, fcur, freads(fprev, (tt + 1) * 2560))
        else:
            a("s_waitcnt vmcnt(0) lgkmcnt(0)")
            a("s_barrier")
            a(f"""
            v_add_u32 v{vK0A}, s{sDELTA}, v{vK0A}
            v_add_u32 v{vK1A}, s{sDELTA}, v{vK1A}
            v_add_u32 v{vVA}, s{sDELTA}, v{vVA}
            s_sub_u32 s{sDELTA}, 0, s{sDELTA}
            s_cmp_ge_u32 s{sST}, {NST - 2}
            s_cbranch_scc1 L_k2_nodma
            """)
            dma_stage(a)
            a("L_k2_nodma:")
            slot(a, 1, 0, fcur, freads(fprev, 0))
    a(f"""
    s_add_u32 s{sST}, s{sST}, 1
    s_cmp_lt_u32 s{sST}, {NST}
    s_cbranch_scc1 L_k2_stage
    s_nop 1
    """)
    for ln in pv(1, (TPS - 1) % 2):
        a(ln)
    a("s_nop 7")
    a("s_nop 7")
    a.c("epilogue: l = row 20 -> reg 8 of lanes 32..63")
    for u in range(2):
        a(f"""
        v_mov_b32 v{vT + 3 + u}, v{O[u] + 8}
        v_mov_b32 v{S[0] + u}, v{O[u] + 8}
        """)
    a("s_nop 1")
    for u in range(2):
        a(f"v_permlane32_swap_b32 v{vT + 3 + u}, v{S[0] + u}")
    a(f"""
    v_min_f32 v{vT + 3}, v{S[0]}, v{S[0] + 1}
    s_mov_b32 s{sT0}, {f2h(THR)}
    v_cmp_nle_f32 vcc, s{sT0}, v{vT + 3}
    v_cmp_u_f32 s[34:35], v{S[0]}, v{S[0] + 1}
    s_or_b64 vcc, vcc, s[34:35]
    s_cmp_lg_u64 vcc, 0
    s_cselect_b32 s{sT0}, 1, 0
    s_lshl_b32 s{sT1}, s{sWV}, 2
    s_add_u32 s{sT1}, s{sT1}, {LDS_FLAG}
    v_mov_b32 v{vT + 3}, s{sT0}
    v_mov_b32 v{vT + 4}, s{sT1}
    s_waitcnt lgkmcnt(0)
    ds_write_b32 v{vT + 4}, v{vT + 3}
    v_and_b32 v{vT + 4}, 7, v{vLANE}
    v_lshlrev_b32 v{vT + 4}, 2, v{vT + 4}
    v_add_u32 v{vT + 4}, {LDS_FLAG}, v{vT + 4}
    s_waitcnt lgkmcnt(0)
    s_barrier
    ds_read_b32 v{vT + 3}, v{vT + 4}
    s_waitcnt lgkmcnt(0)
    v_cmp_ne_u32 vcc, 0, v{vT + 3}
    s_cmp_lg_u64 vcc, 0
    s_cbranch_scc0 L_k2_out
    s_cmp_lg_u32 s{sRETRY}, 0
    s_cbranch_scc1 L_k2_out
    """)
    a.c("fallback: exact row max (two-pass), then rerun with m = true max")
    a(f"s_mov_b32 s{sRETRY}, 1")
    for u in range(2):
        for r in range(16):
            a(f"v_mov_b32 v{M[u] + r}, 0")
        a(f"v_mov_b32 v{vQN + u}, 0xff800000")
    a(f"""
    s_mov_b32 s{sST}, 0
    s_mov_b32 s{sT3}, s{sKV}
    L_k2_maxloop:
    buffer_load_dwordx4 {vr(F[0], 4)}, v{vDMA}, {sr(S_WS, 4)}, s{sT3} offen
    buffer_load_dwordx2 {vr(F[0] + 4, 2)}, v{vT + 1}, {sr(S_WS, 4)}, s{sT3} offen
    s_waitcnt vmcnt(0)
    """)
    for ln in qk(0, 0) + qk(1, 0):
        a(ln)
    a("s_nop 7")
    a("s_nop 7")
    for u in range(2):
        for i in range(0, 16, 2):
            a(f"v_max3_f32 v{vQN + u}, v{S[u] + i}, v{S[u] + i + 1}, v{vQN + u}")
    a(f"""
    s_add_u32 s{sT3}, s{sT3}, 2560
    s_add_u32 s{sST}, s{sST}, 1
    s_cmp_lt_u32 s{sST}, 64
    s_cbranch_scc1 L_k2_maxloop
    """)
    for u in range(2):
        a(f"""
        v_mov_b32 v{vT + 3}, v{vQN + u}
        s_nop 1
        v_permlane32_swap_b32 v{vT + 3}, v{vQN + u}
        v_max_f32 v{vQN + u}, v{vQN + u}, v{vT + 3}
        """)
    a(f"""
    s_barrier
    s_branch L_k2_restart
    L_k2_out:
    s_lshl_b32 s{sT0}, s{sQT}, 5
    s_mul_i32 s{sT0}, s{sT0}, 2560
    s_mul_i32 s{sT1}, s{sQH}, 40
    s_add_u32 s{sT0}, s{sT0}, s{sT1}
    s_add_u32 s{sT0}, s{sT0}, {WS_O}
    s_add_u32 s{sT1}, s{sT0}, {32 * 2560}
    v_mul_u32_u24 v{vT + 3}, 2560, v{vT}
    v_lshrrev_b32 v{vT + 4}, 5, v{vLANE}
    v_lshlrev_b32 v{vT + 4}, 4, v{vT + 4}
    v_add_u32 v{vT + 3}, v{vT + 3}, v{vT + 4}
    """)
    for u in range(2):
        o = O[u]
        a(f"""
        v_rcp_f32 v{S[0] + u}, v{S[0] + u}
        s_nop 0
        v_mul_f32 v{S[0] + u}, v{S[0] + u}, v{vG + u}
        """)
        for r in range(12):
            a(f"v_mul_f32 v{o + r}, v{o + r}, v{S[0] + u}")
        a(f"""
        v_cvt_pk_bf16_f32 v{o}, v{o}, v{o + 1}
        v_cvt_pk_bf16_f32 v{o + 1}, v{o + 2}, v{o + 3}
        v_cvt_pk_bf16_f32 v{o + 2}, v{o + 4}, v{o + 5}
        v_cvt_pk_bf16_f32 v{o + 3}, v{o + 6}, v{o + 7}
        v_cvt_pk_bf16_f32 v{o + 4}, v{o + 8}, v{o + 9}
        v_cvt_pk_bf16_f32 v{o + 5}, v{o + 10}, v{o + 11}
        s_nop 0
        v_permlane32_swap_b32 v{o}, v{o + 2}
        v_permlane32_swap_b32 v{o + 1}, v{o + 3}
        buffer_store_dwordx4 {vr(o, 4)}, v{vT + 3}, {sr(S_WS, 4)}, s{sT0 + u} offen
        s_mov_b64 exec, {sr(sLO, 2)}
        buffer_store_dwordx2 {vr(o + 4, 2)}, v{vT + 3}, {sr(S_WS, 4)}, s{sT0 + u} offen offset:32
        s_mov_b64 exec, -1
        """)
    a("""
    L_k2_done:
    s_endpgm
    """)


def desc(a):
    kernel_desc(a, NAME, NV, 48, NV)
```

```python
from common import *

NAME = "gmix_oproj_kernel"
NSLOT = 7
WREG = NSLOT * 5120
LDS_BYTES = 4 * WREG
NKS = 10

S_W, S_WS, S_OUT = 12, 16, 20
sWV, sRB, sCB = 24, 25, 26
sT0, sT1, sT2 = 27, 28, 29
sKW, sMB = 30, 31
sA = 32
sO = 36

vLANE = 1
vW = 2
vAo = 7
vB = 8
vR = 9
vT = 12
BS = [16, 36]
AF = 56
NV = 216


def acc(i, jt):
    return (i * 5 + jt) * 4


def issue(ks):
    it = []
    sl = ks % NSLOT
    for i in range(5):
        it.append([f"s_add_u32 m0, s{sMB}, {sl * 5120 + i * 1024}", "s_nop 0",
                   f"buffer_load_dwordx4 v{vW + i}, {sr(S_W, 4)}, s{sKW} offen lds"])
    it[-1].append(f"s_add_u32 s{sKW}, s{sKW}, {32 * 1280}")
    for i in range(4):
        it.append([f"buffer_load_dwordx4 {vr(AF + ks * 16 + 4 * i, 4)}, v{vAo}, {sr(S_WS, 4)}, s{sA + i} offen offset:{ks * 64}"])
    return it


def breads(ks, st):
    sl = ks % NSLOT
    r = []
    for jt in range(5):
        for jh in range(2):
            r.append(f"ds_read_b64_tr_b16 {vr(BS[st] + 4 * jt + 2 * jh, 2)}, v{vB} offset:{sl * 5120 + jh * 2560 + 32 * jt}")
    return r


def mfmas(ks, st):
    m = []
    for jt in range(5):
        for i in range(4):
            m.append(f"v_mfma_f32_16x16x32_bf16 {ar(acc(i, jt), 4)}, {vr(BS[st] + 4 * jt, 4)}, {vr(AF + ks * 16 + 4 * i, 4)}, {ar(acc(i, jt), 4)}")
    return m


def gen(a):
    kernel_header(a, NAME)
    a(f"""
    s_cmp_ge_u32 s2, 256
    s_cbranch_scc1 L_k3_done
    s_load_dwordx2 s[4:5], s[0:1], {KA_WOA}
    s_load_dwordx2 s[6:7], s[0:1], {KA_WOB}
    s_load_dwordx2 s[8:9], s[0:1], {KA_OUT}
    s_load_dwordx2 s[10:11], s[0:1], {KA_WS}
    v_lshrrev_b32 v{vT}, 6, v0
    v_and_b32 v{vLANE}, 63, v0
    s_and_b32 s{sT0}, s2, 7
    s_lshr_b32 s{sT1}, s2, 3
    v_readfirstlane_b32 s{sWV}, v{vT}
    s_and_b32 s{sRB}, s{sT0}, 3
    s_lshl_b32 s{sRB}, s{sRB}, 3
    s_and_b32 s{sT2}, s{sT1}, 7
    s_add_u32 s{sRB}, s{sRB}, s{sT2}
    s_lshr_b32 s{sCB}, s{sT0}, 2
    s_lshl_b32 s{sCB}, s{sCB}, 2
    s_lshr_b32 s{sT2}, s{sT1}, 3
    s_add_u32 s{sCB}, s{sCB}, s{sT2}
    s_mul_i32 s{sMB}, s{sWV}, {WREG}
    s_and_b32 s{sT0}, s{sWV}, 1
    s_mul_i32 s{sKW}, s{sT0}, {320 * 1280}
    s_mul_i32 s{sT2}, s{sCB}, 160
    """)
    for i in range(5):
        a(f"""
        v_add_u32 v{vT}, {64 * i}, v{vLANE}
        v_mul_u32_u24 v{vT + 1}, 205, v{vT}
        v_lshrrev_b32 v{vT + 1}, 11, v{vT + 1}
        v_mul_u32_u24 v{vT + 2}, 10, v{vT + 1}
        v_sub_u32 v{vT + 2}, v{vT}, v{vT + 2}
        v_lshrrev_b32 v{vT + 3}, 4, v{vT + 1}
        v_lshlrev_b32 v{vT + 3}, 2, v{vT + 3}
        v_and_b32 v{vT}, 3, v{vT + 1}
        v_add_u32 v{vT + 3}, v{vT + 3}, v{vT}
        v_bfe_u32 v{vT}, v{vT + 1}, 2, 2
        v_lshlrev_b32 v{vT}, 3, v{vT}
        v_add_u32 v{vT + 3}, v{vT + 3}, v{vT}
        v_mul_u32_u24 v{vT + 3}, 1280, v{vT + 3}
        v_lshlrev_b32 v{vT + 2}, 4, v{vT + 2}
        v_add3_u32 v{vW + i}, v{vT + 3}, v{vT + 2}, s{sT2}
        """)
    a(f"""
    v_and_b32 v{vT}, 15, v{vLANE}
    v_lshrrev_b32 v{vT + 1}, 4, v{vLANE}
    v_mul_u32_u24 v{vAo}, 2560, v{vT}
    v_lshlrev_b32 v{vT + 2}, 4, v{vT + 1}
    v_add_u32 v{vAo}, v{vAo}, v{vT + 2}
    """)
    for i in range(4):
        a(f"""
        s_add_u32 s{sT0}, s{sWV}, {i}
        s_and_b32 s{sT0}, s{sT0}, 3
        s_lshl_b32 s{sT0}, s{sT0}, 4
        s_lshl_b32 s{sT1}, s{sRB}, 6
        s_add_u32 s{sT0}, s{sT0}, s{sT1}
        s_mul_i32 s{sT0}, s{sT0}, 2560
        s_mul_i32 s{sT1}, s{sWV}, 640
        s_add_u32 s{sT0}, s{sT0}, s{sT1}
        s_add_u32 s{sA + i}, s{sT0}, {WS_O}
        """)
    a("s_waitcnt lgkmcnt(0)")
    a(f"""
    s_cmp_lt_u32 s{sWV}, 2
    s_cselect_b32 s{S_W}, s4, s6
    s_cselect_b32 s{S_W + 1}, s5, s7
    s_and_b32 s{S_W + 1}, s{S_W + 1}, 0xffff
    s_mov_b32 s{S_W + 2}, {640 * 1280}
    s_mov_b32 s{S_W + 3}, 0x00020000
    """)
    srd(a, S_WS, 10, 11, WS_BYTES)
    srd(a, S_OUT, 8, 9, 2048 * 1280)
    for ks in range(NSLOT):
        for it in issue(ks):
            for ln in it:
                a(ln)
    a(f"""
    v_lshrrev_b32 v{vT + 2}, 2, v{vT}
    v_lshlrev_b32 v{vT + 3}, 2, v{vT + 1}
    v_add_u32 v{vT + 2}, v{vT + 2}, v{vT + 3}
    v_mul_u32_u24 v{vT + 2}, 160, v{vT + 2}
    v_and_b32 v{vT + 3}, 3, v{vLANE}
    v_lshlrev_b32 v{vT + 3}, 3, v{vT + 3}
    v_add3_u32 v{vB}, v{vT + 2}, v{vT + 3}, s{sMB}
    """)
    for r in range(80):
        a(f"v_accvgpr_write_b32 a{r}, 0")
    a(f"s_waitcnt vmcnt({9 * 6 + 4})")
    for ln in breads(0, 0):
        a(ln)
    for ks in range(NKS):
        st = ks % 2
        issued = min(NKS, NSLOT + ks)
        a.c(f"ks {ks}")
        extra = []
        if ks + 1 < NKS:
            n = 4 + 9 * (issued - (ks + 2))
            a(f"s_waitcnt vmcnt({n}) lgkmcnt(0)")
            extra += [[x] for x in breads(ks + 1, 1 - st)]
        else:
            a("s_waitcnt vmcnt(0) lgkmcnt(0)")
        if ks + NSLOT < NKS:
            extra += issue(ks + NSLOT)
        for ln in interleave(mfmas(ks, st), extra):
            a(ln)
    a.c("cross-wave reduction")
    a(f"""
    v_lshlrev_b32 v{vT + 2}, 4, v{vLANE}
    v_add_u32 v{vT + 3}, s{sMB}, v{vT + 2}
    """)
    for d in range(1, 4):
        a(f"""
        s_sub_u32 s{sT0}, s{sWV}, {d}
        s_and_b32 s{sT0}, s{sT0}, 3
        s_mul_i32 s{sT0}, s{sT0}, {WREG}
        s_add_u32 s{sT0}, s{sT0}, {(d - 1) * 5120}
        v_add_u32 v{vR + d - 1}, s{sT0}, v{vT + 2}
        """)
    a("s_nop 3")
    for i in range(1, 4):
        for jt in range(5):
            a(f"ds_write_b128 v{vT + 3}, {ar(acc(i, jt), 4)} offset:{(i - 1) * 5120 + jt * 1024}")
    for r in range(20):
        a(f"v_accvgpr_read_b32 v{AF + r}, a{r}")
    a(f"""
    s_lshl_b32 s{sT0}, s{sRB}, 6
    s_lshl_b32 s{sT1}, s{sWV}, 4
    s_add_u32 s{sT0}, s{sT0}, s{sT1}
    s_mul_i32 s{sT0}, s{sT0}, 1280
    s_mul_i32 s{sT1}, s{sCB}, 160
    s_add_u32 s{sO}, s{sT0}, s{sT1}
    v_mul_u32_u24 v{vT + 2}, 1280, v{vT}
    v_lshlrev_b32 v{vT + 3}, 3, v{vT + 1}
    v_add_u32 v{vT + 2}, v{vT + 2}, v{vT + 3}
    s_waitcnt lgkmcnt(0)
    s_barrier
    """)
    for d in range(3):
        for jt in range(5):
            a(f"ds_read_b128 {vr(AF + 20 + d * 20 + jt * 4, 4)}, v{vR + d} offset:{jt * 1024}")
    for d in range(3):
        a(f"s_waitcnt lgkmcnt({10 - 5 * d})")
        for r in range(20):
            a(f"v_add_f32 v{AF + r}, v{AF + r}, v{AF + 20 + d * 20 + r}")
    for jt in range(5):
        b = AF + 4 * jt
        a(f"""
        v_cvt_pk_bf16_f32 v{b}, v{b}, v{b + 1}
        v_cvt_pk_bf16_f32 v{b + 1}, v{b + 2}, v{b + 3}
        buffer_store_dwordx2 {vr(b, 2)}, v{vT + 2}, {sr(S_OUT, 4)}, s{sO} offen offset:{32 * jt}
        """)
    a("""
    L_k3_done:
    s_endpgm
    """)


def desc(a):
    kernel_desc(a, NAME, NV + 80, 48, NV)
```

```python
import sys
sys.path.insert(0, 'gen')
from common import *
import k1, k2, k3

HDR = open('gated_mix__mha_block__grouped_kv_mqa__prompt.s.ref').read().split('; Override launch geometry')[0]

def build():
    a = Asm()
    out = HDR
    out += "; Generated by gen/gen.py (hand-written generator scripts): projections -> attention -> output projection\n"
    out += f"; @launch kernel={k1.NAME} grid=(256,1,1) block=(256,1,1) lds={k1.LDS_BYTES}\n"
    out += f"; @launch kernel={k2.NAME} grid=(256,1,1) block=(512,1,1) lds={k2.LDS_BYTES}\n"
    out += f"; @launch kernel={k3.NAME} grid=(256,1,1) block=(256,1,1) lds={k3.LDS_BYTES}\n"
    a('.amdgcn_target "amdgcn-amd-amdhsa--gfx950"')
    a('.text')
    for k in (k1, k2, k3):
        k.gen(a)
    a('.section .rodata,"a"')
    for k in (k1, k2, k3):
        k.desc(a)
    return out + a.text()

if __name__ == '__main__':
    dst = sys.argv[1] if len(sys.argv) > 1 else 'gated_mix__mha_block__grouped_kv_mqa__prompt.s'
    open(dst, 'w').write(build())
    print('wrote', dst)
```

```python
import struct


def f2h(x):
    return "0x%08x" % struct.unpack("<I", struct.pack("<f", x))[0]


Q_HEAD_STRIDE = 64 * 1280
KV_HEAD_STRIDE = 65 * 2560
WS_Q = 0
WS_KV = 64 * Q_HEAD_STRIDE
WS_NQ = 0xA40000
WS_NK = 0xAC0000
WS_G = 0xB10000
WS_O = 0xC00000
WS_BYTES = 0x1200000

KA_X, KA_WQKV, KA_WOA, KA_BX, KA_WQB, KA_WKB, KA_WVB, KA_WOB, KA_GATE, KA_OUT, KA_DBG, KA_WS = [8 * i for i in range(12)]


class Asm:
    def __init__(self):
        self.lines = []

    def __call__(self, s):
        for ln in s.strip("\n").split("\n"):
            ln = ln.strip()
            if ln:
                self.lines.append(ln if ln.endswith(":") or ln.startswith(".") else "    " + ln)

    def c(self, s):
        self.lines.append("    ; " + s)

    def text(self):
        return "\n".join(self.lines) + "\n"


def vr(base, n=1):
    return f"v{base}" if n == 1 else f"v[{base}:{base + n - 1}]"


def ar(base, n=1):
    return f"a{base}" if n == 1 else f"a[{base}:{base + n - 1}]"


def sr(base, n=1):
    return f"s{base}" if n == 1 else f"s[{base}:{base + n - 1}]"


def srd(a, d, lo, hi, nbytes):
    a(f"s_mov_b32 s{d}, s{lo}")
    a(f"s_and_b32 s{d + 1}, s{hi}, 0xffff")
    a(f"s_mov_b32 s{d + 2}, {nbytes}")
    a(f"s_mov_b32 s{d + 3}, 0x00020000")


def kernel_header(a, name):
    a(f".globl {name}")
    a(".p2align 8")
    a(f".type {name},@function")
    a(f"{name}:")


def kernel_desc(a, name, nvgpr, nsgpr, accum):
    a(".p2align 6")
    a(f".amdhsa_kernel {name}")
    a(f"  .amdhsa_next_free_vgpr {nvgpr}")
    a(f"  .amdhsa_next_free_sgpr {100 if PROF else nsgpr}")
    a(f"  .amdhsa_accum_offset {accum}")
    a("  .amdhsa_group_segment_fixed_size 0")
    a("  .amdhsa_kernarg_size 96")
    a("  .amdhsa_user_sgpr_count 2")
    a("  .amdhsa_user_sgpr_kernarg_segment_ptr 1")
    a("  .amdhsa_system_sgpr_workgroup_id_x 1")
    a(".end_amdhsa_kernel")


def interleave(main, extra, start=0, every=1):
    out = []
    ei = 0
    for i, m in enumerate(main):
        out.append(m)
        if i >= start and (i - start) % every == 0 and ei < len(extra):
            e = extra[ei]
            out.extend(e if isinstance(e, list) else [e])
            ei += 1
    while ei < len(extra):
        e = extra[ei]
        out.extend(e if isinstance(e, list) else [e])
        ei += 1
    return out


import os
PROF = os.environ.get("PROF", "0") == "1"
WS_PROF = 0x1100000


def stamp(a, i):
    if not PROF:
        return
    a(f"s_memtime s[{80 + 2 * i}:{81 + 2 * i}]")
    if i == 0:
        a("s_memrealtime s[92:93]")


def prof_store(a, kidx, srd_ws, swv, nst):
    if not PROF:
        return
    a("s_memrealtime s[94:95]")
    a(f"s_memtime s[{80 + 2 * nst}:{81 + 2 * nst}]")
    a("s_waitcnt lgkmcnt(0)")
    a("s_getreg_b32 s90, hwreg(HW_REG_XCC_ID)")
    for i in range(6):
        a(f"v_mov_b32 v{2 + i}, s{80 + 2 * i}")
    a("v_mov_b32 v8, s92")
    a("v_mov_b32 v9, s94")
    a("s_lshl_b32 s96, s2, 3")
    a(f"s_add_u32 s96, s96, s{swv}")
    a("s_lshl_b32 s96, s96, 5")
    a(f"s_add_u32 s96, s96, {WS_PROF + kidx * 0x10000}")
    a("v_mov_b32 v0, 0")
    a("s_mov_b64 exec, 1")
    a(f"buffer_store_dwordx4 v[2:5], v0, s[{srd_ws}:{srd_ws + 3}], s96 offen")
    a(f"buffer_store_dwordx4 v[6:9], v0, s[{srd_ws}:{srd_ws + 3}], s96 offen offset:16")


def tl(a, vreg, sidx):
    if not PROF:
        return
    a("s_memtime s[98:99]")
    a("s_waitcnt lgkmcnt(0)")
    a(f"s_mov_b32 m0, s{sidx}")
    a("s_nop 0")
    a(f"v_writelane_b32 v{vreg}, s98, m0")
    a(f"s_add_u32 s{sidx}, s{sidx}, 1")


def tl_store(a, vreg, srd_ws, swv, vtmp):
    if not PROF:
        return
    a("s_lshl_b32 s96, s2, 3")
    a(f"s_add_u32 s96, s96, s{swv}")
    a("s_lshl_b32 s96, s96, 8")
    a(f"s_add_u32 s96, s96, {WS_PROF + 0x40000}")
    a(f"v_mbcnt_lo_u32_b32 v{vtmp}, -1, 0")
    a(f"v_mbcnt_hi_u32_b32 v{vtmp}, -1, v{vtmp}")
    a(f"v_lshlrev_b32 v{vtmp}, 2, v{vtmp}")
    a(f"buffer_store_dword v{vreg}, v{vtmp}, s[{srd_ws}:{srd_ws + 3}], s96 offen")
```

```python
import math
import os
from common import *

NAME = "gmix_proj_kernel"
NSLOT = 4
SLOT = 39424
NCHUNK = 10
LDS_BYTES = NSLOT * SLOT
QSCALE = (20 ** -0.5) * math.log2(math.e)
ST = " " + os.environ.get("K1ST", "sc1")

S_X, S_W, S_E, S_WS, S_GW = 20, 24, 28, 32, 36
sRB, sCB, sWV, sWR, sWC, sROT, sLDW = 40, 41, 42, 43, 44, 45, 46
sKX, sKW, sKE, sMX, sMW, sME = 47, 48, 49, 50, 51, 52
sDLT = 53
sEM = 54
sT0, sT1, sT2, sT3 = 56, 57, 58, 59
sDST, sHS, sTS, sNB = 60, 61, 62, 63
sSC = 64
sSG = 66
sLDW64, sGATE = 70, 71
sQ16 = 72
sR16 = 74
sSLOT, sJ, sLW, sCNT = 76, 77, 78, 79
sA, sB_, sC = 4, 8, 12
sEA, sEB, sEC = 20, 21, 22

vLANE = 1
vX, vW, vE = 16, 20, 25
vXA, vWBm, vWBl, vWE = 26, 28, 29, 30
vG0, vG1 = 36, 37
vLm, vLl, vLn, vLk, vLm2 = 38, 39, 40, 41, 42
vVo = 43
SETS = [48, 88]
ACC = 128
ACCE = 208
GT = 212


def acc(i, jt):
    return ACC + (i * 5 + jt) * 4


def dma_chunk(a):
    a(f"s_add_u32 s{sT0}, s{sMX}, s{sSLOT}")
    a(f"s_add_u32 s{sT1}, s{sMW}, s{sSLOT}")
    a(f"s_add_u32 s{sT2}, s{sME}, s{sSLOT}")
    for i in range(4):
        a(f"s_add_u32 m0, s{sT0}, {i * 1024}")
        a("s_nop 0")
        a(f"buffer_load_dwordx4 v{vX + i}, {sr(S_X, 4)}, s{sKX} offen lds")
    for i in range(5):
        a(f"s_add_u32 m0, s{sT1}, {16384 + i * 1024}")
        a("s_nop 0")
        a(f"buffer_load_dwordx4 v{vW + i}, {sr(S_W, 4)}, s{sKW} offen lds")
    a(f"""
    s_add_u32 m0, s{sT2}, 36864
    s_mov_b64 exec, {sr(sEM, 2)}
    buffer_load_dwordx4 v{vE}, {sr(S_E, 4)}, s{sKE} offen lds
    s_mov_b64 exec, -1
    s_add_u32 s{sKX}, s{sKX}, 128
    s_add_u32 s{sKW}, s{sKW}, s{sLDW64}
    s_add_u32 s{sKE}, s{sKE}, 2560
    s_cmp_eq_u32 s{sKX}, 1280
    s_cmov_b32 s{sKX}, 0
    s_cmov_b32 s{sKW}, 0
    s_cmov_b32 s{sKE}, 0
    s_add_u32 s{sSLOT}, s{sSLOT}, {SLOT}
    s_cmp_eq_u32 s{sSLOT}, {NSLOT * SLOT}
    s_cmov_b32 s{sSLOT}, 0
    """)


def frag_reads(ks, st, vtype):
    b = SETS[st]
    r = []
    for i in range(4):
        r.append(f"ds_read_b128 {vr(b + 4 * i, 4)}, v{vXA + ks} offset:{i * 2048}")
    for jt in range(5):
        for jh in range(2):
            if vtype:
                reg, off = vWBm, 32 * jt
            elif jt < 4:
                reg, off = vWBm, 40 * jt
            else:
                reg, off = vWBl, 0
            r.append(f"ds_read_b64_tr_b16 {vr(b + 16 + 4 * jt + 2 * jh, 2)}, v{reg} offset:{ks * 5120 + jh * 2560 + off}")
    for jh in range(2):
        r.append(f"ds_read_b64_tr_b16 {vr(b + 36 + 2 * jh, 2)}, v{vWE} offset:{ks * 1280 + jh * 160}")
    return r


def mfmas(st, vtype):
    b = SETS[st]
    m = []
    for jt in range(5):
        for i in range(4):
            x, w = vr(b + 4 * i, 4), vr(b + 16 + 4 * jt, 4)
            A, B = (x, w) if vtype else (w, x)
            m.append(f"v_mfma_f32_16x16x32_bf16 {vr(acc(i, jt), 4)}, {A}, {B}, {vr(acc(i, jt), 4)}")
    x, w = vr(b, 4), vr(b + 36, 4)
    A, B = (x, w) if vtype else (w, x)
    m.append(f"v_mfma_f32_16x16x32_bf16 {vr(ACCE, 4)}, {A}, {B}, {vr(ACCE, 4)}")
    return m


def main_loop(a, vtype):
    lbl = "L_k1_loop_v" if vtype else "L_k1_loop_q"
    stamp(a, 1)
    a("s_barrier")
    stamp(a, 2)
    for ln in frag_reads(0, 0, vtype):
        a(ln)
    a(f"s_mov_b32 s{sCNT}, 0")
    a(".p2align 6")
    a(f"{lbl}:")
    a(f"""
    s_and_b32 s{sT0}, s{sCNT}, 3
    s_cmp_eq_u32 s{sT0}, 3
    s_mov_b32 s{sDLT}, {SLOT}
    s_cmov_b32 s{sDLT}, {(-3 * SLOT) & 0xffffffff}
    s_add_u32 s{sCNT}, s{sCNT}, 1
    s_waitcnt lgkmcnt(0)
    """)
    adv = [f"v_add_u32 v{r}, s{sDLT}, v{r}" for r in (vXA, vXA + 1, vWBm, vWE) + (() if vtype else (vWBl,))]
    ex = [[x] for x in frag_reads(1, 1, vtype)] + [[x] for x in adv]
    for ln in interleave(mfmas(0, vtype), ex):
        a(ln)
    a("s_waitcnt lgkmcnt(0)")
    a("s_barrier")
    for ln in interleave(mfmas(1, vtype), frag_reads(0, 0, vtype)):
        a(ln)
    a(f"s_cmp_lt_u32 s{sCNT}, {NCHUNK}")
    a(f"s_cbranch_scc1 {lbl}")
    a("s_nop 7")
    stamp(a, 3)


def rowmax(a, r):
    for k in (8, 4, 2, 1):
        a("s_nop 1")
        a(f"v_max_f32_dpp v{r}, v{r}, v{r} row_ror:{k} row_mask:0xf bank_mask:0xf")


def loader(a):
    a.c("X DMA voffsets")
    a(f"""
    v_lshrrev_b32 v2, 3, v{vLANE}
    v_and_b32 v3, 7, v{vLANE}
    v_xor_b32 v3, v3, v2
    v_lshlrev_b32 v3, 4, v3
    v_mul_u32_u24 v2, 1280, v2
    v_add_u32 v2, v2, v3
    s_lshl_b32 s{sT1}, s{sRB}, 7
    """)
    for g in range(2):
        a(f"""
        s_cmp_eq_u32 s{sWC}, 0
        s_cselect_b32 s{sT0}, s{sSG + g}, s{sSG + 2 + g}
        s_lshl_b32 s{sT0}, s{sT0}, 4
        s_add_u32 s{sT0}, s{sT0}, s{sT1}
        s_mul_i32 s{sT0}, s{sT0}, 1280
        v_add_u32 v{vX + 2 * g}, s{sT0}, v2
        v_add_u32 v{vX + 2 * g + 1}, {8 * 1280}, v{vX + 2 * g}
        """)
    a.c("W DMA voffsets")
    a(f"""
    s_mul_i32 s{sT0}, s{sWR}, 160
    s_add_u32 s{sT0}, s{sT0}, s{sT3}
    s_lshl_b32 s{sT1}, s{sWC}, 5
    s_mul_i32 s{sT1}, s{sT1}, s{sLDW}
    s_add_u32 s{sT0}, s{sT0}, s{sT1}
    """)
    for i in range(5):
        a(f"""
        v_add_u32 v2, {64 * i}, v{vLANE}
        v_mul_u32_u24 v3, 205, v2
        v_lshrrev_b32 v3, 11, v3
        v_mul_u32_u24 v4, 10, v3
        v_sub_u32 v4, v2, v4
        v_lshrrev_b32 v5, 4, v3
        v_and_b32 v6, 3, v3
        v_lshl_add_u32 v5, v5, 2, v6
        v_bfe_u32 v6, v3, 2, 2
        v_lshl_add_u32 v5, v6, 3, v5
        v_mul_lo_u32 v5, v5, s{sLDW}
        v_lshlrev_b32 v4, 4, v4
        v_add3_u32 v{vW + i}, v5, v4, s{sT0}
        """)
    a.c("k-order stagger between workgroups that share tiles (speed hint only)")
    a(f"""
    v_lshlrev_b32 v{vE}, 4, v{vLANE}
    v_add_u32 v{vE}, s{sME}, v{vE}
    s_and_b32 s{sT0}, s{sRB}, 7
    s_add_u32 s{sT0}, s{sT0}, s{sROT}
    s_mul_i32 s{sT1}, s{sT0}, 52
    s_lshr_b32 s{sT1}, s{sT1}, 8
    s_mul_i32 s{sT1}, s{sT1}, 5
    s_sub_u32 s{sT0}, s{sT0}, s{sT1}
    s_lshl_b32 s{sT0}, s{sT0}, 1
    s_lshl_b32 s{sKX}, s{sT0}, 7
    s_mul_i32 s{sKW}, s{sT0}, s{sLDW64}
    s_mul_i32 s{sKE}, s{sT0}, 2560
    s_waitcnt lgkmcnt(0)
    """)
    srd(a, S_X, 4, 5, 2048 * 1280)
    a(f"""
    s_cmp_lt_u32 s{sCB}, 12
    s_cselect_b32 s{S_W}, s6, s8
    s_cselect_b32 s{S_W + 1}, s7, s9
    s_mov_b32 s{S_W + 2}, {640 * 1280}
    s_cmov_b32 s{S_W + 2}, {640 * 3840}
    s_and_b32 s{S_W + 1}, s{S_W + 1}, 0xffff
    s_mov_b32 s{S_W + 3}, 0x00020000
    s_lshr_b32 s{sT0}, s{sCB}, 2
    s_cmp_eq_u32 s{sT0}, 2
    s_cselect_b32 s{S_E}, s12, s10
    s_cselect_b32 s{S_E + 1}, s13, s11
    s_and_b32 s{S_E + 1}, s{S_E + 1}, 0xffff
    s_mov_b32 s{S_E + 2}, 25600
    s_mov_b32 s{S_E + 3}, 0x00020000
    """)
    if PROF:
        a("s_mov_b32 s97, 1")
        a("v_mov_b32 v52, 0")
        a("v_writelane_b32 v52, s80, 0")

    def sync(n):
        tl(a, 52, 97)
        a(f"s_waitcnt vmcnt({n})")
        tl(a, 52, 97)
        a("s_barrier")
        tl(a, 52, 97)
    a.c("loader loop")
    a(f"""
    L_k1_ld:
    s_cmp_lt_u32 s{sJ}, 2
    s_cbranch_scc1 L_k1_ld2
    """)
    sync(10)
    a("L_k1_ld2:")
    dma_chunk(a)
    a(f"""
    s_add_u32 s{sJ}, s{sJ}, 1
    s_cmp_lt_u32 s{sJ}, {NCHUNK}
    s_cbranch_scc1 L_k1_ld
    """)
    sync(10)
    sync(0)
    srd(a, S_WS, 16, 17, WS_BYTES)
    srd(a, S_GW, 14, 15, 1280)
    tl_store(a, 52, S_WS, sWV, 53)
    a(f"""
    s_cmp_lg_u32 s{sGATE}, 0
    s_cbranch_scc1 L_k1_gate
    s_barrier
    s_branch L_k1_done
    L_k1_gate:
    s_lshr_b32 s{sT0}, s{sCB}, 3
    s_lshl_b32 s{sT0}, s{sT0}, 2
    s_add_u32 s{sT0}, s{sT0}, s{sROT}
    s_lshl_b32 s{sT0}, s{sT0}, 4
    s_lshl_b32 s{sT1}, s{sRB}, 7
    s_add_u32 s{sT0}, s{sT0}, s{sT1}
    s_lshl_b32 s{sT1}, s{sLW}, 2
    s_add_u32 s{sT0}, s{sT0}, s{sT1}
    v_lshrrev_b32 v2, 4, v{vLANE}
    v_add_u32 v{vG1}, s{sT0}, v2
    v_and_b32 v3, 15, v{vLANE}
    v_lshlrev_b32 v3, 4, v3
    v_mul_u32_u24 v2, 1280, v{vG1}
    v_add_u32 v2, v2, v3
    """)
    for i in range(5):
        a(f"buffer_load_dwordx4 {vr(GT + 4 * i, 4)}, v2, {sr(S_X, 4)}, 0 offen offset:{256 * i}")
        a(f"buffer_load_dwordx4 {vr(GT + 20 + 4 * i, 4)}, v3, {sr(S_GW, 4)}, 0 offen offset:{256 * i}")
    a("""
    s_barrier
    v_mov_b32 v2, 0
    v_mov_b32 v3, 0
    s_waitcnt vmcnt(0)
    """)
    for i in range(20):
        x, g = GT + i, GT + 20 + i
        a(f"""
        v_lshlrev_b32 v4, 16, v{x}
        v_lshlrev_b32 v5, 16, v{g}
        v_and_b32 v6, 0xffff0000, v{x}
        v_and_b32 v7, 0xffff0000, v{g}
        v_mul_f32 v4, v4, v5
        v_mul_f32 v6, v6, v7
        v_cvt_pk_bf16_f32 v4, v4, v6
        v_lshlrev_b32 v5, 16, v4
        v_and_b32 v6, 0xffff0000, v4
        v_add_f32 v2, v2, v5
        v_add_f32 v3, v3, v6
        """)
    a("v_add_f32 v2, v2, v3")
    for k in (8, 4, 2, 1):
        a("s_nop 1")
        a(f"v_add_f32_dpp v2, v2, v2 row_ror:{k} row_mask:0xf bank_mask:0xf")
    a(f"""
    v_cvt_pk_bf16_f32 v2, v2, v2
    v_lshlrev_b32 v2, 16, v2
    v_mul_f32 v2, {f2h(-math.log2(math.e))}, v2
    v_exp_f32 v2, v2
    s_nop 0
    v_add_f32 v2, 1.0, v2
    v_rcp_f32 v2, v2
    s_nop 0
    v_cvt_pk_bf16_f32 v2, v2, v2
    v_lshlrev_b32 v{vG0}, 16, v2
    v_sub_f32 v2, 1.0, v{vG0}
    v_cvt_pk_bf16_f32 v2, v2, v2
    v_lshlrev_b32 v2, 16, v2
    v_lshlrev_b32 v3, 2, v{vG1}
    s_mov_b32 s{sT0}, {WS_G}
    s_mov_b32 s{sT1}, {WS_G + 8192}
    s_mov_b64 exec, {sr(sR16, 2)}
    buffer_store_dword v{vG0}, v3, {sr(S_WS, 4)}, s{sT0} offen{ST}
    buffer_store_dword v2, v3, {sr(S_WS, 4)}, s{sT1} offen{ST}
    s_branch L_k1_done
    """)


def qk_path(a):
    a.c("QK epilogue setup")
    a(f"""
    s_cmp_eq_u32 s{sT0}, 1
    s_mov_b32 s{sHS}, {Q_HEAD_STRIDE}
    s_cmov_b32 s{sHS}, {KV_HEAD_STRIDE}
    s_mov_b32 s{sTS}, 1280
    s_cmov_b32 s{sTS}, 2560
    s_cselect_b32 s{sSC}, 1.0, {f2h(QSCALE)}
    s_cselect_b32 s{sSC + 1}, 1.0, {f2h(QSCALE)}
    s_cselect_b32 s{sDST}, {WS_KV}, {WS_Q}
    s_mov_b32 s{sNB}, {WS_NQ}
    s_cmov_b32 s{sNB}, {WS_NK}
    s_cselect_b32 s{sT3}, 9, 13
    s_lshl_b32 s{sT1}, s{sROT}, 3
    s_cmp_eq_u32 s{sT0}, 3
    s_cselect_b32 s{sT2}, 32, 0
    s_add_u32 s{sT1}, s{sT1}, s{sT2}
    s_lshl_b32 s{sT2}, s{sWC}, 2
    s_add_u32 s{sT1}, s{sT1}, s{sT2}
    s_mul_i32 s{sT2}, s{sT1}, s{sHS}
    s_add_u32 s{sDST}, s{sDST}, s{sT2}
    s_lshl_b32 s{sT2}, s{sT1}, s{sT3}
    s_add_u32 s{sNB}, s{sNB}, s{sT2}
    v_lshrrev_b32 v4, 1, v3
    v_lshlrev_b32 v4, 9, v4
    v_and_b32 v5, 1, v3
    v_lshlrev_b32 v6, 4, v2
    v_add_u32 v4, v4, v6
    v_lshl_add_u32 v{vLm}, v5, 3, v4
    v_mul_lo_u32 v5, v5, s{sHS}
    v_add_u32 v{vLm2}, v4, v5
    v_mul_lo_u32 v4, v3, s{sHS}
    v_lshl_add_u32 v{vLl}, v2, 3, v4
    v_lshlrev_b32 v4, 13, v3
    v_lshl_add_u32 v{vLn}, v2, 2, v4
    v_lshlrev_b32 v{vLk}, 9, v3
    s_lshl_b32 s{sHS}, s{sHS}, 1
    """)
    KB = WS_KV + 32 * KV_HEAD_STRIDE
    for i in range(4):
        a(f"""
        s_lshr_b32 s{sT0}, s{sSG + i}, 1
        s_lshl_b32 s{sT1}, s{sRB}, 2
        s_add_u32 s{sT3}, s{sT0}, s{sT1}
        s_mul_i32 s{sT0}, s{sT3}, s{sTS}
        s_add_u32 s{sT0}, s{sT0}, s{sDST}
        s_and_b32 s{sT1}, s{sSG + i}, 1
        s_lshl_b32 s{sT2}, s{sT1}, 8
        s_add_u32 s{sA + i}, s{sT0}, s{sT2}
        s_lshl_b32 s{sT1}, s{sT1}, 7
        s_add_u32 s{sB_ + i}, s{sT0}, s{sT1}
        s_add_u32 s{sB_ + i}, s{sB_ + i}, 1024
        """)
        if i == 0:
            a(f"""
            s_mul_i32 s{sT0}, s{sT3}, 2560
            s_add_u32 s{sT0}, s{sT0}, {KB}
            s_add_u32 s{sEA}, s{sT0}, s{sT2}
            s_add_u32 s{sEB}, s{sT0}, s{sT1}
            s_add_u32 s{sEB}, s{sEB}, 1024
            """)
        a(f"""
        s_lshl_b32 s{sT2}, s{sRB}, 3
        s_add_u32 s{sT2}, s{sT2}, s{sSG + i}
        s_lshl_b32 s{sT2}, s{sT2}, 2
        s_lshl_b32 s{sT3}, s{sT2}, 4
        s_cmp_eq_u32 s{sTS}, 2560
        s_cselect_b32 s{sT3}, s{sT2}, s{sT3}
        s_add_u32 s{sC + i}, s{sT3}, s{sNB}
        """)
        if i == 0:
            a(f"""
            s_lshl_b32 s{sT3}, s{sWC}, 9
            s_add_u32 s{sEC}, s{sT2}, s{sT3}
            s_add_u32 s{sEC}, s{sEC}, {WS_NK + 32 * 512}
            """)
    main_loop(a, False)
    a.c("QK epilogue")
    for i in range(4):
        for jt in range(5):
            b = acc(i, jt)
            a(f"v_pk_mul_f32 {vr(b, 2)}, {vr(b, 2)}, {sr(sSC, 2)}")
            a(f"v_pk_mul_f32 {vr(b + 2, 2)}, {vr(b + 2, 2)}, {sr(sSC, 2)}")
        for jt in range(5):
            b = acc(i, jt)
            d = acc(i, jt & ~1) + 2 * (jt & 1)
            a(f"v_cvt_pk_bf16_f32 v{d}, v{b}, v{b + 1}")
            a(f"v_cvt_pk_bf16_f32 v{d + 1}, v{b + 2}, v{b + 3}")
        for jt in range(5):
            d = acc(i, jt & ~1) + 2 * (jt & 1)
            a(f"v_dot2_f32_bf16 v{2 + jt}, v{d}, v{d}, 0")
        for jt in range(5):
            d = acc(i, jt & ~1) + 2 * (jt & 1)
            a(f"v_dot2_f32_bf16 v{2 + jt}, v{d + 1}, v{d + 1}, v{2 + jt}")
        b4 = acc(i, 4)
        a(f"buffer_store_dwordx2 {vr(b4, 2)}, v{vLl}, {sr(S_WS, 4)}, s{sB_ + i} offen{ST}")
        for p in range(2):
            d = acc(i, 2 * p)
            a(f"v_permlane16_swap_b32 v{d}, v{d + 2}")
            a(f"v_permlane16_swap_b32 v{d + 1}, v{d + 3}")
            a(f"buffer_store_dwordx4 {vr(d, 4)}, v{vLm2}, {sr(S_WS, 4)}, s{sA + i} offen{ST}")
            if p == 0:
                a(f"s_add_u32 s{sA + i}, s{sA + i}, s{sHS}")
        a(f"""
        v_permlane16_swap_b32 v2, v3
        v_permlane16_swap_b32 v4, v5
        v_add_f32 v2, v2, v3
        v_add_f32 v4, v4, v5
        s_nop 1
        v_permlane32_swap_b32 v2, v4
        v_add_f32 v2, v2, v4
        v_add_f32 v{8 + i}, v2, v6
        """)
    a(f"""
    s_cmp_eq_u32 s{sTS}, 2560
    s_cbranch_scc1 L_k1_kn
    """)
    for i in range(4):
        a(f"buffer_store_dword v{8 + i}, v{vLn}, {sr(S_WS, 4)}, s{sC + i} offen{ST}")
    b = ACCE
    a.c("K_B extra tile (cb<4)")
    a(f"""
    s_cmp_ge_u32 s{sCB}, 4
    s_cbranch_scc1 L_k1_done
    v_cvt_pk_bf16_f32 v{b}, v{b}, v{b + 1}
    v_cvt_pk_bf16_f32 v{b + 1}, v{b + 2}, v{b + 3}
    v_dot2_f32_bf16 v2, v{b}, v{b}, 0
    v_dot2_f32_bf16 v2, v{b + 1}, v{b + 1}, v2
    s_cmp_eq_u32 s{sWC}, 1
    s_cbranch_scc1 L_k1_kb1
    buffer_store_dwordx2 {vr(b, 2)}, v{vLm}, {sr(S_WS, 4)}, s{sEA} offen{ST}
    s_nop 0
    v_mov_b32 v3, v2
    s_nop 1
    v_permlane16_swap_b32 v2, v3
    v_add_f32 v2, v2, v3
    v_mov_b32 v3, v2
    s_nop 1
    v_permlane32_swap_b32 v2, v3
    v_add_f32 v2, v2, v3
    s_branch L_k1_kb2
    L_k1_kb1:
    s_mov_b64 exec, {sr(sQ16, 2)}
    buffer_store_dwordx2 {vr(b, 2)}, v{vLl}, {sr(S_WS, 4)}, s{sEB} offen{ST}
    s_mov_b64 exec, -1
    L_k1_kb2:
    """)
    rowmax(a, 2)
    a(f"""
    s_mov_b64 exec, 1
    buffer_store_dword v2, v{vLk}, {sr(S_WS, 4)}, s{sEC} offen{ST}
    s_branch L_k1_done
    L_k1_kn:
    """)
    for k in (8, 4, 2, 1):
        for i in range(4):
            a(f"v_max_f32_dpp v{8 + i}, v{8 + i}, v{8 + i} row_ror:{k} row_mask:0xf bank_mask:0xf")
    a(f"s_mov_b64 exec, {sr(sR16, 2)}")
    for i in range(4):
        a(f"buffer_store_dword v{8 + i}, v{vLk}, {sr(S_WS, 4)}, s{sC + i} offen{ST}")
    a("s_branch L_k1_done")


def v_path(a):
    a.c("V epilogue setup")
    a(f"""
    v_and_b32 v4, 1, v3
    v_mul_u32_u24 v4, 320, v4
    v_lshrrev_b32 v5, 1, v3
    s_mov_b32 s{sHS}, {KV_HEAD_STRIDE}
    v_lshlrev_b32 v8, 4, v5
    v_lshl_add_u32 v9, v5, 3, v4
    """)
    for p in range(3):
        a(f"v_add_u32 v5, {32 * p}, v2")
        if p < 2:
            a("v_add_u32 v5, v5, v8")
        a(f"""
        v_mul_u32_u24 v6, 205, v5
        v_lshrrev_b32 v6, 12, v6
        v_mul_u32_u24 v7, 20, v6
        v_sub_u32 v7, v5, v7
        v_mul_lo_u32 v6, v6, s{sHS}
        v_lshlrev_b32 v7, 4, v7
        v_add3_u32 v{vVo + p}, v6, v7, v{4 if p < 2 else 9}
        """)
    a(f"""
    s_lshl_b32 s{sT0}, s{sWC}, 4
    v_add_u32 v5, s{sT0}, v2
    v_cmp_gt_u32 {sr(sSC, 2)}, 20, v5
    v_lshl_add_u32 v{vVo + 3}, v5, 4, v9
    s_lshl_b32 s{sT1}, s{sROT}, 3
    s_lshl_b32 s{sT2}, s{sWC}, 2
    s_add_u32 s{sT1}, s{sT1}, s{sT2}
    s_mul_i32 s{sDST}, s{sT1}, s{sHS}
    s_add_u32 s{sDST}, s{sDST}, {WS_KV + 2560 + 1280}
    """)
    for i in range(4):
        a(f"""
        s_lshr_b32 s{sT0}, s{sSG + i}, 1
        s_lshl_b32 s{sT1}, s{sRB}, 2
        s_add_u32 s{sT0}, s{sT0}, s{sT1}
        s_mul_i32 s{sT0}, s{sT0}, 2560
        s_and_b32 s{sT1}, s{sSG + i}, 1
        s_mul_i32 s{sT1}, s{sT1}, 640
        s_add_u32 s{sT0}, s{sT0}, s{sT1}
        s_add_u32 s{sA + i}, s{sT0}, s{sDST}
        """)
        if i == 0:
            a(f"s_add_u32 s{sEB}, s{sT0}, {WS_KV + 32 * KV_HEAD_STRIDE + 2560 + 1280}")
    main_loop(a, True)
    a.c("V epilogue")
    for i in range(4):
        for jt in range(5):
            b = acc(i, jt)
            d = acc(i, jt & ~1) + 2 * (jt & 1)
            a(f"v_cvt_pk_bf16_f32 v{d}, v{b}, v{b + 1}")
            a(f"v_cvt_pk_bf16_f32 v{d + 1}, v{b + 2}, v{b + 3}")
        a(f"buffer_store_dwordx2 {vr(acc(i, 4), 2)}, v{vVo + 2}, {sr(S_WS, 4)}, s{sA + i} offen{ST}")
        for p in range(2):
            d = acc(i, 2 * p)
            a(f"v_permlane32_swap_b32 v{d}, v{d + 2}")
            a(f"v_permlane32_swap_b32 v{d + 1}, v{d + 3}")
            a(f"buffer_store_dwordx4 {vr(d, 4)}, v{vVo + p}, {sr(S_WS, 4)}, s{sA + i} offen{ST}")
    b = ACCE
    a(f"""
    v_cvt_pk_bf16_f32 v{b}, v{b}, v{b + 1}
    v_cvt_pk_bf16_f32 v{b + 1}, v{b + 2}, v{b + 3}
    s_mov_b64 exec, {sr(sSC, 2)}
    buffer_store_dwordx2 {vr(b, 2)}, v{vVo + 3}, {sr(S_WS, 4)}, s{sEB} offen{ST}
    """)


def gen(a):
    kernel_header(a, NAME)
    a("""
    s_cmp_ge_u32 s2, 256
    s_cbranch_scc1 L_k1_exit
    """)
    stamp(a, 0)
    dbgt_start(a)
    a(f"""
    s_load_dwordx4 s[4:7], s[0:1], {KA_X}
    s_load_dwordx4 s[8:11], s[0:1], {KA_WQB}
    s_load_dwordx2 s[12:13], s[0:1], {KA_WVB}
    s_load_dwordx2 s[14:15], s[0:1], {KA_GATE}
    s_load_dwordx2 s[16:17], s[0:1], {KA_WS}
    v_lshrrev_b32 v2, 6, v0
    v_and_b32 v{vLANE}, 63, v0
    s_and_b32 s{sT0}, s2, 7
    s_lshr_b32 s{sT1}, s2, 3
    v_readfirstlane_b32 s{sWV}, v2
    s_and_b32 s{sRB}, s{sT0}, 1
    s_lshl_b32 s{sRB}, s{sRB}, 3
    s_and_b32 s{sT2}, s{sT1}, 7
    s_add_u32 s{sRB}, s{sRB}, s{sT2}
    s_lshr_b32 s{sCB}, s{sT0}, 1
    s_lshl_b32 s{sCB}, s{sCB}, 2
    s_lshr_b32 s{sROT}, s{sT1}, 3
    s_add_u32 s{sCB}, s{sCB}, s{sROT}
    s_and_b32 s{sLW}, s{sWV}, 3
    s_lshr_b32 s{sWR}, s{sLW}, 1
    s_and_b32 s{sWC}, s{sLW}, 1
    s_mov_b32 s{sR16}, 0x00010001
    s_mov_b32 s{sR16 + 1}, 0x00010001
    s_lshl_b32 s{sT1}, s{sWR}, 2
    """)
    for i in range(4):
        a(f"""
        s_add_u32 s{sT0}, s{sROT}, {i}
        s_and_b32 s{sT0}, s{sT0}, 3
        s_add_u32 s{sSG + i}, s{sT0}, s{sT1}
        """)
    a(f"""
    s_cmp_lt_u32 s{sWV}, 4
    s_cbranch_scc1 L_k1_compute
    s_mov_b32 s{sEM}, -1
    s_mov_b32 s{sEM + 1}, 0xff
    s_lshl_b32 s{sMX}, s{sLW}, 12
    s_mul_i32 s{sMW}, s{sLW}, 5120
    s_mul_i32 s{sME}, s{sLW}, 640
    s_mov_b32 s{sSLOT}, 0
    s_mov_b32 s{sJ}, 0
    s_cmp_lt_u32 s{sCB}, 12
    s_mov_b32 s{sLDW}, 1280
    s_cmov_b32 s{sLDW}, 3840
    s_cselect_b32 s{sT0}, 0, 12
    s_sub_u32 s{sT0}, s{sCB}, s{sT0}
    s_mul_i32 s{sT3}, s{sT0}, 320
    s_lshl_b32 s{sLDW64}, s{sLDW}, 6
    s_bfe_u32 s{sGATE}, s{sCB}, 0x10002
    """)
    loader(a)
    a("L_k1_compute:")
    a.c("fragment read addresses")
    a(f"""
    s_mov_b32 s{sQ16}, 0xffff
    s_mov_b32 s{sQ16 + 1}, 0
    v_and_b32 v2, 15, v{vLANE}
    v_lshrrev_b32 v3, 4, v{vLANE}
    v_and_b32 v4, 7, v{vLANE}
    v_xor_b32 v4, v4, v3
    v_lshlrev_b32 v4, 4, v4
    v_lshlrev_b32 v5, 7, v2
    s_lshl_b32 s{sT0}, s{sWR}, 13
    v_add3_u32 v{vXA}, v5, v4, s{sT0}
    v_xor_b32 v{vXA + 1}, 64, v{vXA}
    v_lshrrev_b32 v4, 2, v2
    v_and_b32 v5, 3, v{vLANE}
    v_lshl_add_u32 v6, v3, 2, v4
    v_mul_u32_u24 v6, 160, v6
    s_mul_i32 s{sT0}, s{sWC}, 10240
    s_add_u32 s{sT0}, s{sT0}, 16384
    v_add_u32 v6, s{sT0}, v6
    v_lshlrev_b32 v7, 3, v5
    v_add_u32 v{vWBm}, v6, v7
    v_mul_u32_u24 v8, 40, v5
    v_add3_u32 v{vWBl}, v6, v8, 32
    v_lshl_add_u32 v6, v3, 3, v4
    v_mul_u32_u24 v6, 40, v6
    v_mov_b32 v8, 32
    s_cmp_eq_u32 s{sWC}, 0
    s_cselect_b64 vcc, -1, 0
    v_add_u32 v6, 36864, v6
    v_cndmask_b32 v7, v8, v7, vcc
    v_add_u32 v{vWE}, v6, v7
    """)
    for r in range(ACC, ACCE + 4):
        a(f"v_mov_b32 v{r}, 0")
    a("s_waitcnt lgkmcnt(0)")
    srd(a, S_WS, 16, 17, WS_BYTES)
    a(f"""
    s_lshr_b32 s{sT0}, s{sCB}, 2
    s_cmp_eq_u32 s{sT0}, 2
    s_cbranch_scc1 L_k1_vtype
    """)
    qk_path(a)
    a("L_k1_vtype:")
    v_path(a)
    a("L_k1_done:")
    prof_store(a, 0, S_WS, sWV, 4)
    dbgt_end(a, 0, sWV)
    a("""
    L_k1_exit:
    s_endpgm
    """)


def desc(a):
    kernel_desc(a, NAME, 256, 96, 256)
```

```python
import math
import os
from common import *

NAME = "gmix_attn_kernel"
TPS = 16
NST = 64 // TPS
STAGE = TPS * 2560
LDS_FLAG = 2 * STAGE
LDS_BYTES = 2 * STAGE + 256
DPW = STAGE // 1024 // 8
THR = 2.0 ** -40
ST = ' ' + os.environ.get('K2ST', 'sc1')

S_WS = 8
sWV, sBR, sKV, sQH, sQT = 12, 13, 14, 15, 16
sT0, sT1, sT2, sT3 = 17, 18, 19, 20
sVM = 22
sLO = 24
sST, sDM, sDS, sDELTA, sRETRY = 26, 27, 28, 29, 30
sQ0, sQ1 = 31, 32
sKO = 33
sO0, sO1 = 36, 38

vLANE = 1
vK0A, vK1A, vVA, vDMA = 2, 3, 4, 5
vQN = 6
vG = 8
vT = 10
Q = [16, 24]
F = [32, 48]
P = [64, 72]
M = [80, 96]
O = [112, 128]
S = [144, 160]
NV = 176


def qk(u, fs):
    f = F[fs]
    return [f"v_mfma_f32_32x32x16_bf16 {vr(S[u], 16)}, {vr(f, 4)}, {vr(Q[u], 4)}, {vr(M[u], 16)}",
            f"v_mfma_f32_32x32x8_bf16 {vr(S[u], 16)}, {vr(f + 4, 2)}, {vr(Q[u] + 4, 2)}, {vr(S[u], 16)}"]


def pv(u, fs):
    f = F[fs]
    return [f"v_mfma_f32_32x32x16_bf16 {vr(O[u], 16)}, {vr(f + 8, 4)}, {vr(P[u], 4)}, {vr(O[u], 16)}",
            f"v_mfma_f32_32x32x16_bf16 {vr(O[u], 16)}, {vr(f + 12, 4)}, {vr(P[u] + 4, 4)}, {vr(O[u], 16)}"]


def freads(fs, off):
    f = F[fs]
    return [[f"ds_read_b128 {vr(f, 4)}, v{vK0A} offset:{off}",
             f"ds_read_b64 {vr(f + 4, 2)}, v{vK1A} offset:{off}"],
            [f"s_mov_b64 exec, {sr(sVM, 2)}",
             f"ds_read_b128 {vr(f + 8, 4)}, v{vVA} offset:{off}",
             f"ds_read_b128 {vr(f + 12, 4)}, v{vVA} offset:{off + 640}",
             "s_mov_b64 exec, -1"]]


def slot(a, ue, um, fs, extras):
    mm = qk(um, fs) + pv(um, fs)
    for j in range(4):
        a(mm[j])
        if j < len(extras):
            for ln in extras[j]:
                a(ln)
        for r in range(4):
            a(f"v_exp_f32 v{S[ue] + 4 * j + r}, v{S[ue] + 4 * j + r}")
        for r in range(2):
            a(f"v_cvt_pk_bf16_f32 v{P[ue] + 2 * j + r}, v{S[ue] + 4 * j + 2 * r}, v{S[ue] + 4 * j + 2 * r + 1}")


def dma_stage(a):
    for i in range(DPW):
        a(f"s_add_u32 m0, s{sDM}, {i * 1024}")
        if i:
            a(f"s_add_u32 s{sT0}, s{sDS}, {i * 1024}")
        else:
            a(f"s_mov_b32 s{sT0}, s{sDS}")
        a(f"buffer_load_dwordx4 v{vDMA}, {sr(S_WS, 4)}, s{sT0} offen lds")
    a(f"s_add_u32 s{sDS}, s{sDS}, {STAGE}")
    a(f"s_xor_b32 s{sDM}, s{sDM}, s{sKO}")


def gen(a):
    kernel_header(a, NAME)
    a(f"""
    s_cmp_ge_u32 s2, 256
    s_cbranch_scc1 L_k2_done
    """)
    stamp(a, 0)
    dbgt_start(a)
    a(f"""
    s_load_dwordx2 s[4:5], s[0:1], {KA_WS}
    s_load_dwordx2 s[6:7], s[0:1], {KA_WOA}
    s_load_dwordx2 s[40:41], s[0:1], {KA_WOB}
    v_lshrrev_b32 v{vT}, 6, v0
    v_and_b32 v{vLANE}, 63, v0
    s_and_b32 s{sT0}, s2, 7
    s_bfe_u32 s{sT1}, s2, 0x40003
    v_readfirstlane_b32 s{sWV}, v{vT}
    s_lshr_b32 s{sBR}, s2, 7
    s_lshl_b32 s{sT0}, s{sT0}, 2
    s_lshr_b32 s{sT2}, s{sT1}, 2
    s_add_u32 s{sT0}, s{sT0}, s{sT2}
    s_and_b32 s{sT1}, s{sT1}, 3
    s_lshl_b32 s{sT2}, s{sBR}, 5
    s_add_u32 s{sQH}, s{sT0}, s{sT2}
    s_cmp_eq_u32 s{sBR}, 0
    s_cselect_b32 s{sT3}, s{sT0}, 32
    s_mul_i32 s{sKV}, s{sT3}, {KV_HEAD_STRIDE}
    s_add_u32 s{sKV}, s{sKV}, {WS_KV}
    s_lshl_b32 s{sQT}, s{sT1}, 4
    s_lshl_b32 s{sT0}, s{sWV}, 1
    s_add_u32 s{sQT}, s{sQT}, s{sT0}
    s_mov_b32 s{sVM}, 0xfffff
    s_mov_b32 s{sVM + 1}, 0xfffff
    s_mov_b32 s{sLO}, -1
    s_mov_b32 s{sLO + 1}, 0
    s_mov_b32 s{sRETRY}, 0
    s_mul_i32 s{sQ0}, s{sQH}, {Q_HEAD_STRIDE}
    s_mul_i32 s{sT0}, s{sQT}, 1280
    s_add_u32 s{sQ0}, s{sQ0}, s{sT0}
    s_add_u32 s{sQ0}, s{sQ0}, {WS_Q}
    s_add_u32 s{sQ1}, s{sQ0}, 1280
    v_lshlrev_b32 v{vDMA}, 4, v{vLANE}
    v_and_b32 v{vT}, 31, v{vLANE}
    v_lshlrev_b32 v{vT + 1}, 3, v{vT}
    v_add_u32 v{vT + 1}, 1024, v{vT + 1}
    v_lshlrev_b32 v{vT + 2}, 2, v{vT}
    v_mov_b32 v{Q[0] + 4}, 0
    v_mov_b32 v{Q[0] + 5}, 0
    v_mov_b32 v{Q[1] + 4}, 0
    v_mov_b32 v{Q[1] + 5}, 0
    s_waitcnt lgkmcnt(0)
    """)
    srd(a, S_WS, 4, 5, WS_BYTES)
    a(f"""
    s_mul_i32 s{sDM}, s{sWV}, {DPW * 1024}
    s_add_u32 s{sKO}, s{sDM}, {STAGE}
    s_xor_b32 s{sKO}, s{sKO}, s{sDM}
    s_lshl_b32 s{sT0}, s{sT3}, 9
    s_add_u32 s{sT0}, s{sT0}, {WS_NK}
    v_lshlrev_b32 v{vT + 3}, 3, v{vLANE}
    v_mov_b32 v{S[0] + 2}, 0
    v_mov_b32 v{S[0] + 3}, 0
    buffer_load_dwordx2 {vr(S[0], 2)}, v{vT + 3}, {sr(S_WS, 4)}, s{sT0} offen
    s_cmp_eq_u32 s{sBR}, 0
    s_cbranch_scc1 L_k2_non2
    buffer_load_dwordx2 {vr(S[0] + 2, 2)}, v{vT + 3}, {sr(S_WS, 4)}, s{sT0} offen offset:512
    L_k2_non2:
    s_lshl_b32 s{sT0}, s{sQH}, 13
    s_lshl_b32 s{sT1}, s{sQT}, 7
    s_add_u32 s{sT0}, s{sT0}, s{sT1}
    s_add_u32 s{sT0}, s{sT0}, {WS_NQ}
    buffer_load_dword v{vQN}, v{vT + 2}, {sr(S_WS, 4)}, s{sT0} offen
    buffer_load_dword v{vQN + 1}, v{vT + 2}, {sr(S_WS, 4)}, s{sT0} offen offset:128
    buffer_load_dwordx4 {vr(Q[0], 4)}, v{vDMA}, {sr(S_WS, 4)}, s{sQ0} offen
    buffer_load_dwordx4 {vr(Q[1], 4)}, v{vDMA}, {sr(S_WS, 4)}, s{sQ1} offen
    s_mov_b64 exec, {sr(sLO, 2)}
    buffer_load_dwordx2 {vr(Q[0] + 4, 2)}, v{vT + 1}, {sr(S_WS, 4)}, s{sQ0} offen
    buffer_load_dwordx2 {vr(Q[1] + 4, 2)}, v{vT + 1}, {sr(S_WS, 4)}, s{sQ1} offen
    s_mov_b64 exec, -1
    s_lshl_b32 s{sT0}, s{sBR}, 13
    s_add_u32 s{sT0}, s{sT0}, s{sT1}
    s_add_u32 s{sT0}, s{sT0}, {WS_G}
    buffer_load_dword v{vG}, v{vT + 2}, {sr(S_WS, 4)}, s{sT0} offen
    buffer_load_dword v{vG + 1}, v{vT + 2}, {sr(S_WS, 4)}, s{sT0} offen offset:128
    L_k2_restart:
    buffer_load_dwordx4 {vr(F[1], 4)}, v{vDMA}, {sr(S_WS, 4)}, s{sKV} offen
    buffer_load_dwordx2 {vr(F[1] + 4, 2)}, v{vT + 1}, {sr(S_WS, 4)}, s{sKV} offen
    s_mul_i32 s{sDM}, s{sWV}, {DPW * 1024}
    s_add_u32 s{sDS}, s{sKV}, s{sDM}
    s_add_u32 s{sDS}, s{sDS}, 2560
    """)
    dma_stage(a)
    dma_stage(a)
    a.c("LDS read addresses")
    a(f"""
    v_lshlrev_b32 v{vK0A}, 4, v{vLANE}
    v_mov_b32 v{vK1A}, v{vT + 1}
    v_lshrrev_b32 v{vT + 3}, 5, v{vLANE}
    v_mul_u32_u24 v{vT + 3}, 320, v{vT + 3}
    v_lshlrev_b32 v{vVA}, 4, v{vT}
    v_add_u32 v{vVA}, v{vVA}, v{vT + 3}
    v_add_u32 v{vVA}, 1280, v{vVA}
    s_mov_b32 s{sDELTA}, {STAGE}
    s_mov_b32 s{sST}, 0
    v_cmp_eq_u32 vcc, 20, v{vT}
    v_mov_b32 v{vT + 3}, 0x3f803f80
    s_nop 0
    v_cndmask_b32 v{vT + 3}, 0, v{vT + 3}, vcc
    """)
    for fs in range(2):
        for r in range(8):
            a(f"v_mov_b32 v{F[fs] + 8 + r}, v{vT + 3}")
    for r in range(8):
        a(f"v_mov_b32 v{P[1] + r}, 0")
    for u in range(2):
        for r in range(16):
            a(f"v_mov_b32 v{O[u] + r}, 0")
    a(f"""
    s_cmp_lg_u32 s{sRETRY}, 0
    s_cbranch_scc1 L_k2_havem
    s_waitcnt vmcnt({2 * DPW + 2 + 8})
    v_max_f32 v{vT + 3}, v{S[0]}, v{S[0] + 1}
    v_max_f32 v{vT + 5}, v{S[0] + 2}, v{S[0] + 3}
    """)
    for k in (8, 4, 2, 1):
        a("s_nop 0")
        a(f"v_max_f32_dpp v{vT + 3}, v{vT + 3}, v{vT + 3} row_ror:{k} row_mask:0xf bank_mask:0xf")
        a(f"v_max_f32_dpp v{vT + 5}, v{vT + 5}, v{vT + 5} row_ror:{k} row_mask:0xf bank_mask:0xf")
    a(f"""
    v_mov_b32 v{vT + 4}, v{vT + 3}
    v_mov_b32 v{S[0]}, v{vT + 5}
    s_nop 1
    v_permlane16_swap_b32 v{vT + 3}, v{vT + 4}
    v_permlane16_swap_b32 v{vT + 5}, v{S[0]}
    v_max_f32 v{vT + 3}, v{vT + 3}, v{vT + 4}
    v_max_f32 v{vT + 5}, v{vT + 5}, v{S[0]}
    v_mov_b32 v{vT + 4}, v{vT + 3}
    v_mov_b32 v{S[0]}, v{vT + 5}
    s_nop 1
    v_permlane32_swap_b32 v{vT + 3}, v{vT + 4}
    v_permlane32_swap_b32 v{vT + 5}, v{S[0]}
    v_max_f32 v{vT + 3}, v{vT + 3}, v{vT + 4}
    v_max_f32 v{vT + 5}, v{vT + 5}, v{S[0]}
    v_add_f32 v{vT + 3}, v{vT + 3}, v{vT + 5}
    s_waitcnt vmcnt({2 * DPW + 2 + 6})
    v_mul_f32 v{vQN}, v{vQN}, v{vT + 3}
    v_mul_f32 v{vQN + 1}, v{vQN + 1}, v{vT + 3}
    v_sqrt_f32 v{vQN}, v{vQN}
    v_sqrt_f32 v{vQN + 1}, v{vQN + 1}
    s_nop 0
    L_k2_havem:
    """)
    for u in range(2):
        for r in range(16):
            a(f"v_sub_f32 v{M[u] + r}, 0, v{vQN + u}")
    a(f"s_waitcnt vmcnt({2 * DPW})")
    for ln in qk(0, 1):
        a(ln)
    stamp(a, 1)
    a(f"s_waitcnt vmcnt({DPW})")
    a("s_barrier")
    stamp(a, 2)
    for grp in freads(0, 0):
        for ln in grp:
            a(ln)
    a("s_nop 7")
    a(".p2align 6")
    a("L_k2_stage:")
    for tt in range(TPS):
        fprev, fcur = (tt + 1) % 2, tt % 2
        a.c(f"tile {tt} slot1")
        slot(a, 0, 1, fprev, [])
        a.c(f"tile {tt} slot2")
        if tt < TPS - 1:
            a("s_waitcnt lgkmcnt(0)")
            slot(a, 1, 0, fcur, freads(fprev, (tt + 1) * 2560))
        else:
            a("s_waitcnt vmcnt(0) lgkmcnt(0)")
            a("s_barrier")
            a(f"""
            v_add_u32 v{vK0A}, s{sDELTA}, v{vK0A}
            v_add_u32 v{vK1A}, s{sDELTA}, v{vK1A}
            v_add_u32 v{vVA}, s{sDELTA}, v{vVA}
            s_sub_u32 s{sDELTA}, 0, s{sDELTA}
            s_cmp_ge_u32 s{sST}, {NST - 2}
            s_cbranch_scc1 L_k2_nodma
            """)
            dma_stage(a)
            a.c("L2 warm-up of the output-projection weights (speed hint only)")
            a(f"""
            s_cmp_eq_u32 s{sST}, 0
            s_cselect_b32 s44, s6, s40
            s_cselect_b32 s45, s7, s41
            s_and_b32 s45, s45, 0xffff
            s_mov_b32 s46, {640 * 1280}
            s_mov_b32 s47, 0x00020000
            s_lshr_b32 s{sT0}, s2, 3
            s_lshl_b32 s{sT0}, s{sT0}, 3
            s_add_u32 s{sT0}, s{sT0}, s{sWV}
            s_mul_i32 s{sT0}, s{sT0}, 3200
            v_lshlrev_b32 v{vT + 5}, 6, v{vLANE}
            buffer_load_dword v{vT + 5}, v{vT + 5}, s[44:47], s{sT0} offen
            """)
            a("L_k2_nodma:")
            slot(a, 1, 0, fcur, freads(fprev, 0))
    a(f"""
    s_add_u32 s{sST}, s{sST}, 1
    s_cmp_lt_u32 s{sST}, {NST}
    s_cbranch_scc1 L_k2_stage
    s_nop 1
    """)
    for ln in pv(1, (TPS - 1) % 2):
        a(ln)
    a("s_nop 7")
    a("s_nop 7")
    stamp(a, 3)
    a.c("epilogue: l = row 20 -> reg 8 of lanes 32..63")
    for u in range(2):
        a(f"""
        v_mov_b32 v{vT + 3 + u}, v{O[u] + 8}
        v_mov_b32 v{S[0] + u}, v{O[u] + 8}
        """)
    a("s_nop 1")
    for u in range(2):
        a(f"v_permlane32_swap_b32 v{vT + 3 + u}, v{S[0] + u}")
    a(f"""
    v_min_f32 v{vT + 3}, v{S[0]}, v{S[0] + 1}
    s_mov_b32 s{sT0}, {f2h(THR)}
    v_cmp_nle_f32 vcc, s{sT0}, v{vT + 3}
    v_cmp_u_f32 s[34:35], v{S[0]}, v{S[0] + 1}
    s_or_b64 vcc, vcc, s[34:35]
    s_cmp_lg_u64 vcc, 0
    s_cselect_b32 s{sT0}, 1, 0
    s_lshl_b32 s{sT1}, s{sWV}, 2
    s_add_u32 s{sT1}, s{sT1}, {LDS_FLAG}
    v_mov_b32 v{vT + 3}, s{sT0}
    v_mov_b32 v{vT + 4}, s{sT1}
    s_waitcnt lgkmcnt(0)
    ds_write_b32 v{vT + 4}, v{vT + 3}
    v_and_b32 v{vT + 4}, 7, v{vLANE}
    v_lshlrev_b32 v{vT + 4}, 2, v{vT + 4}
    v_add_u32 v{vT + 4}, {LDS_FLAG}, v{vT + 4}
    s_waitcnt lgkmcnt(0)
    s_barrier
    ds_read_b32 v{vT + 3}, v{vT + 4}
    s_waitcnt lgkmcnt(0)
    v_cmp_ne_u32 vcc, 0, v{vT + 3}
    s_cmp_lg_u64 vcc, 0
    s_cbranch_scc0 L_k2_out
    s_cmp_lg_u32 s{sRETRY}, 0
    s_cbranch_scc1 L_k2_out
    """)
    a.c("fallback: exact row max (two-pass), then rerun with m = true max")
    a(f"s_mov_b32 s{sRETRY}, 1")
    for u in range(2):
        for r in range(16):
            a(f"v_mov_b32 v{M[u] + r}, 0")
        a(f"v_mov_b32 v{vQN + u}, 0xff800000")
    a(f"""
    s_mov_b32 s{sST}, 0
    s_mov_b32 s{sT3}, s{sKV}
    L_k2_maxloop:
    buffer_load_dwordx4 {vr(F[0], 4)}, v{vDMA}, {sr(S_WS, 4)}, s{sT3} offen
    buffer_load_dwordx2 {vr(F[0] + 4, 2)}, v{vT + 1}, {sr(S_WS, 4)}, s{sT3} offen
    s_waitcnt vmcnt(0)
    """)
    for ln in qk(0, 0) + qk(1, 0):
        a(ln)
    a("s_nop 7")
    a("s_nop 7")
    for u in range(2):
        for i in range(0, 16, 2):
            a(f"v_max3_f32 v{vQN + u}, v{S[u] + i}, v{S[u] + i + 1}, v{vQN + u}")
    a(f"""
    s_add_u32 s{sT3}, s{sT3}, 2560
    s_add_u32 s{sST}, s{sST}, 1
    s_cmp_lt_u32 s{sST}, 64
    s_cbranch_scc1 L_k2_maxloop
    """)
    for u in range(2):
        a(f"""
        v_mov_b32 v{vT + 3}, v{vQN + u}
        s_nop 1
        v_permlane32_swap_b32 v{vT + 3}, v{vQN + u}
        v_max_f32 v{vQN + u}, v{vQN + u}, v{vT + 3}
        """)
    a(f"""
    s_barrier
    s_branch L_k2_restart
    L_k2_out:
    s_lshr_b32 s{sT0}, s{sQH}, 4
    s_mul_i32 s{sT0}, s{sT0}, 10
    s_and_b32 s{sT1}, s{sQH}, 15
    s_lshr_b32 s{sT2}, s{sT1}, 1
    s_add_u32 s{sT2}, s{sT2}, s{sT0}
    s_lshl_b32 s{sT2}, s{sT2}, 10
    s_and_b32 s{sT3}, s{sT1}, 1
    s_lshl_b32 s{sT3}, s{sT3}, 9
    s_add_u32 s{sT2}, s{sT2}, s{sT3}
    s_lshr_b32 s{sT3}, s{sT1}, 3
    s_add_u32 s{sT0}, s{sT0}, s{sT3}
    s_add_u32 s{sT0}, s{sT0}, 8
    s_lshl_b32 s{sT0}, s{sT0}, 10
    s_bfe_u32 s{sT3}, s{sT1}, 0x20001
    s_lshl_b32 s{sT3}, s{sT3}, 8
    s_add_u32 s{sT0}, s{sT0}, s{sT3}
    s_and_b32 s{sT3}, s{sT1}, 1
    s_lshl_b32 s{sT3}, s{sT3}, 3
    s_add_u32 s{sT0}, s{sT0}, s{sT3}
    s_mul_i32 s{sT1}, s{sQT}, {2 * 40960}
    s_add_u32 s{sT1}, s{sT1}, {WS_O}
    s_add_u32 s{sO0}, s{sT2}, s{sT1}
    s_add_u32 s{sO0 + 1}, s{sO0}, {2 * 40960}
    s_add_u32 s{sO1}, s{sT0}, s{sT1}
    s_add_u32 s{sO1 + 1}, s{sO1}, {2 * 40960}
    v_lshrrev_b32 v{vT + 3}, 4, v{vT}
    v_mul_u32_u24 v{vT + 3}, 40960, v{vT + 3}
    v_and_b32 v{vT + 4}, 15, v{vLANE}
    v_lshlrev_b32 v{vT + 4}, 4, v{vT + 4}
    v_add_u32 v{vT + 3}, v{vT + 3}, v{vT + 4}
    v_lshrrev_b32 v{vT + 4}, 5, v{vLANE}
    v_lshlrev_b32 v{vT + 4}, 8, v{vT + 4}
    v_add_u32 v{vT + 3}, v{vT + 3}, v{vT + 4}
    """)
    for u in range(2):
        o = O[u]
        a(f"""
        v_rcp_f32 v{S[0] + u}, v{S[0] + u}
        s_nop 0
        v_mul_f32 v{S[0] + u}, v{S[0] + u}, v{vG + u}
        """)
        for r in range(12):
            a(f"v_mul_f32 v{o + r}, v{o + r}, v{S[0] + u}")
        a(f"""
        v_cvt_pk_bf16_f32 v{o}, v{o}, v{o + 1}
        v_cvt_pk_bf16_f32 v{o + 1}, v{o + 2}, v{o + 3}
        v_cvt_pk_bf16_f32 v{o + 2}, v{o + 4}, v{o + 5}
        v_cvt_pk_bf16_f32 v{o + 3}, v{o + 6}, v{o + 7}
        v_cvt_pk_bf16_f32 v{o + 4}, v{o + 8}, v{o + 9}
        v_cvt_pk_bf16_f32 v{o + 5}, v{o + 10}, v{o + 11}
        s_nop 0
        v_permlane32_swap_b32 v{o}, v{o + 2}
        v_permlane32_swap_b32 v{o + 1}, v{o + 3}
        buffer_store_dwordx4 {vr(o, 4)}, v{vT + 3}, {sr(S_WS, 4)}, s{sO0 + u} offen{ST}
        s_mov_b64 exec, {sr(sLO, 2)}
        buffer_store_dwordx2 {vr(o + 4, 2)}, v{vT + 3}, {sr(S_WS, 4)}, s{sO1 + u} offen{ST}
        s_mov_b64 exec, -1
        """)
    prof_store(a, 1, S_WS, sWV, 4)
    dbgt_end(a, 1, sWV)
    a("""
    L_k2_done:
    s_endpgm
    """)


def desc(a):
    kernel_desc(a, NAME, NV, 48, NV)
```

```python
import os
from common import *

NAME = "gmix_oproj_kernel"
NSLOT = 7
WREG = NSLOT * 5120
LDS_BYTES = 4 * WREG
NKS = 10
DEPTH = int(os.environ.get('K3DEPTH', '3'))

S_W, S_WS, S_OUT = 12, 16, 20
sWV, sRB, sCB = 24, 25, 26
sT0, sT1, sT2 = 27, 28, 29
sKW, sMB = 30, 31
sA = 32
sO = 36

vLANE = 1
vW = 2
vAo = 7
vB = 8
vR = 9
vT = 12
vW2 = 216
BS = [16, 36]
AF = 56
vO = 224
NV = 228
ST = ' ' + os.environ.get('K3ST', '')


def acc(i, jt):
    return (i * 5 + jt) * 4


def issue(ks):
    it = []
    sl = ks % NSLOT
    for i in range(5):
        it.append([f"s_add_u32 m0, s{sMB}, {sl * 5120 + i * 1024}", "s_nop 0",
                   f"buffer_load_dwordx4 v{(vW if ks < 8 else vW2) + i}, {sr(S_W, 4)}, s{sKW} offen lds"])
    if ks < 7:
        it[-1].append(f"s_add_u32 s{sKW}, s{sKW}, {40 * 1280}")
    elif ks == 7:
        it[-1].append(f"s_sub_u32 s{sKW}, s{sKW}, {7 * 40 * 1280}")
    else:
        it[-1].append(f"s_add_u32 s{sKW}, s{sKW}, {160 * 1280}")
    for i in range(4):
        it.append([f"buffer_load_dwordx4 {vr(AF + ks * 16 + 4 * i, 4)}, v{vAo}, {sr(S_WS, 4)}, s{sA + i} offen offset:{(ks % 4) * 1024}"])
    if ks % 4 == 3:
        it[-1] += [f"s_add_u32 s{sA + i}, s{sA + i}, 4096" for i in range(4)]
    return it


def breads(ks, st):
    sl = ks % NSLOT
    r = []
    for jt in range(5):
        for jh in range(2):
            r.append(f"ds_read_b64_tr_b16 {vr(BS[st] + 4 * jt + 2 * jh, 2)}, v{vB} offset:{sl * 5120 + jh * 2560 + 32 * jt}")
    return r


def mfmas(ks, st):
    m = []
    for jt in range(5):
        for i in range(4):
            m.append(f"v_mfma_f32_16x16x32_bf16 {ar(acc(i, jt), 4)}, {vr(BS[st] + 4 * jt, 4)}, {vr(AF + ks * 16 + 4 * i, 4)}, {ar(acc(i, jt), 4)}")
    return m


def gen(a):
    kernel_header(a, NAME)
    a(f"""
    s_cmp_ge_u32 s2, 256
    s_cbranch_scc1 L_k3_done
    """)
    stamp(a, 0)
    dbgt_start(a)
    a(f"""
    s_load_dwordx2 s[4:5], s[0:1], {KA_WOA}
    s_load_dwordx2 s[6:7], s[0:1], {KA_WOB}
    s_load_dwordx2 s[8:9], s[0:1], {KA_OUT}
    s_load_dwordx2 s[10:11], s[0:1], {KA_WS}
    v_lshrrev_b32 v{vT}, 6, v0
    v_and_b32 v{vLANE}, 63, v0
    s_and_b32 s{sT0}, s2, 7
    s_lshr_b32 s{sT1}, s2, 3
    v_readfirstlane_b32 s{sWV}, v{vT}
    s_lshl_b32 s{sRB}, s{sT0}, 2
    s_and_b32 s{sT2}, s{sT1}, 3
    s_add_u32 s{sRB}, s{sRB}, s{sT2}
    s_lshr_b32 s{sCB}, s{sT1}, 2
    s_mul_i32 s{sMB}, s{sWV}, {WREG}
    s_and_b32 s{sT0}, s{sWV}, 1
    s_mul_i32 s{sKW}, s{sT0}, {320 * 1280}
    s_mul_i32 s{sT2}, s{sCB}, 160
    """)
    for i in range(5):
        a(f"""
        v_add_u32 v{vT}, {64 * i}, v{vLANE}
        v_mul_u32_u24 v{vT + 1}, 205, v{vT}
        v_lshrrev_b32 v{vT + 1}, 11, v{vT + 1}
        v_mul_u32_u24 v{vT + 2}, 10, v{vT + 1}
        v_sub_u32 v{vT + 2}, v{vT}, v{vT + 2}
        v_lshlrev_b32 v{vT + 2}, 4, v{vT + 2}
        """)
        if i < 3:
            a(f"""
            v_mul_u32_u24 v{AF}, 1280, v{vT + 1}
            v_add_u32 v{vO + i}, v{AF}, v{vT + 2}
            """)
        a(f"""
        v_lshrrev_b32 v{AF}, 4, v{vT + 1}
        v_and_b32 v{AF + 1}, 3, v{vT + 1}
        v_bfe_u32 v{AF + 2}, v{vT + 1}, 2, 1
        v_bfe_u32 v{AF + 3}, v{vT + 1}, 3, 1
        v_bfe_u32 v{AF + 4}, v{vT + 1}, 2, 2
        v_lshl_add_u32 v{AF + 4}, v{AF + 4}, 1, v{AF}
        v_mul_u32_u24 v{AF + 4}, 20, v{AF + 4}
        v_add3_u32 v{AF + 4}, v{AF + 4}, v{AF + 1}, 16
        v_mul_u32_u24 v{AF + 4}, 1280, v{AF + 4}
        v_add3_u32 v{vW2 + i}, v{AF + 4}, v{vT + 2}, s{sT2}
        v_mul_u32_u24 v{vT + 3}, 20, v{AF + 3}
        v_lshl_add_u32 v{vT + 3}, v{AF + 2}, 3, v{vT + 3}
        v_lshl_add_u32 v{vT + 3}, v{AF}, 2, v{vT + 3}
        v_add_u32 v{vT + 3}, v{vT + 3}, v{AF + 1}
        v_mul_u32_u24 v{vT + 3}, 1280, v{vT + 3}
        v_add3_u32 v{vW + i}, v{vT + 3}, v{vT + 2}, s{sT2}
        """)
    a(f"""
    v_and_b32 v{vT}, 15, v{vLANE}
    v_lshrrev_b32 v{vT + 1}, 4, v{vLANE}
    v_lshlrev_b32 v{vAo}, 4, v{vLANE}
    """)
    for i in range(4):
        a(f"""
        s_add_u32 s{sT0}, s{sWV}, {i}
        s_and_b32 s{sT0}, s{sT0}, 3
        s_lshl_b32 s{sT1}, s{sRB}, 2
        s_add_u32 s{sT0}, s{sT0}, s{sT1}
        s_mul_i32 s{sT0}, s{sT0}, 40960
        s_mul_i32 s{sT1}, s{sWV}, 10240
        s_add_u32 s{sT0}, s{sT0}, s{sT1}
        s_add_u32 s{sA + i}, s{sT0}, {WS_O}
        """)
    a("s_waitcnt lgkmcnt(0)")
    a(f"""
    s_cmp_lt_u32 s{sWV}, 2
    s_cselect_b32 s{S_W}, s4, s6
    s_cselect_b32 s{S_W + 1}, s5, s7
    s_and_b32 s{S_W + 1}, s{S_W + 1}, 0xffff
    s_mov_b32 s{S_W + 2}, {640 * 1280}
    s_mov_b32 s{S_W + 3}, 0x00020000
    """)
    srd(a, S_WS, 10, 11, WS_BYTES)
    srd(a, S_OUT, 8, 9, 2048 * 1280)
    a.c("L2 prefetch of this XCD group's O rows (speed hint only)")
    a(f"""
    s_and_b32 s{sT0}, s2, 7
    s_mul_i32 s{sT0}, s{sT0}, {16 * 40960}
    s_lshr_b32 s{sT1}, s2, 3
    s_lshl_b32 s{sT1}, s{sT1}, 2
    s_add_u32 s{sT1}, s{sT1}, s{sWV}
    s_mul_i32 s{sT1}, s{sT1}, 5120
    s_add_u32 s{sT0}, s{sT0}, s{sT1}
    s_add_u32 s{sT0}, s{sT0}, {WS_O}
    v_lshlrev_b32 v{vT + 2}, 6, v{vLANE}
    buffer_load_dword v{vW2 + 5}, v{vT + 2}, {sr(S_WS, 4)}, s{sT0} offen
    buffer_load_dword v{vW2 + 6}, v{vT + 2}, {sr(S_WS, 4)}, s{sT0} offen offset:1024
    """)
    for ks in range(DEPTH):
        for it in issue(ks):
            for ln in it:
                a(ln)
    a(f"""
    v_lshrrev_b32 v{vT + 2}, 2, v{vT}
    v_lshlrev_b32 v{vT + 3}, 2, v{vT + 1}
    v_add_u32 v{vT + 2}, v{vT + 2}, v{vT + 3}
    v_mul_u32_u24 v{vT + 2}, 160, v{vT + 2}
    v_and_b32 v{vT + 3}, 3, v{vLANE}
    v_lshlrev_b32 v{vT + 3}, 3, v{vT + 3}
    v_add3_u32 v{vB}, v{vT + 2}, v{vT + 3}, s{sMB}
    """)
    for r in range(80):
        a(f"v_accvgpr_write_b32 a{r}, 0")
    stamp(a, 1)
    a(f"s_waitcnt vmcnt({9 * (DEPTH - 1) + 4})")
    stamp(a, 2)
    for ln in breads(0, 0):
        a(ln)
    for ks in range(NKS):
        st = ks % 2
        issued = min(NKS, DEPTH + ks)
        a.c(f"ks {ks}")
        extra = []
        if ks + 1 < NKS:
            n = 4 + 9 * (issued - (ks + 2))
            a(f"s_waitcnt vmcnt({n}) lgkmcnt(0)")
            extra += [[x] for x in breads(ks + 1, 1 - st)]
        else:
            a("s_waitcnt vmcnt(0) lgkmcnt(0)")
        if ks + DEPTH < NKS:
            extra += issue(ks + DEPTH)
        for ln in interleave(mfmas(ks, st), extra):
            a(ln)
    stamp(a, 3)
    a.c("cross-wave reduction")
    a(f"""
    v_lshlrev_b32 v{vT + 2}, 4, v{vLANE}
    v_add_u32 v{vT + 3}, s{sMB}, v{vT + 2}
    """)
    for d in range(1, 4):
        a(f"""
        s_sub_u32 s{sT0}, s{sWV}, {d}
        s_and_b32 s{sT0}, s{sT0}, 3
        s_mul_i32 s{sT0}, s{sT0}, {WREG}
        s_add_u32 s{sT0}, s{sT0}, {(d - 1) * 5120}
        v_add_u32 v{vR + d - 1}, s{sT0}, v{vT + 2}
        """)
    a("s_nop 3")
    for i in range(1, 4):
        for jt in range(5):
            a(f"ds_write_b128 v{vT + 3}, {ar(acc(i, jt), 4)} offset:{(i - 1) * 5120 + jt * 1024}")
    for r in range(20):
        a(f"v_accvgpr_read_b32 v{AF + r}, a{r}")
    a(f"""
    s_lshl_b32 s{sT0}, s{sRB}, 6
    s_lshl_b32 s{sT1}, s{sWV}, 4
    s_add_u32 s{sT0}, s{sT0}, s{sT1}
    s_mul_i32 s{sT0}, s{sT0}, 1280
    s_mul_i32 s{sT1}, s{sCB}, 160
    s_add_u32 s{sO}, s{sT0}, s{sT1}
    v_mul_u32_u24 v{vT + 2}, 160, v{vT}
    v_lshlrev_b32 v{vB}, 3, v{vT + 1}
    v_add3_u32 v{vT + 2}, v{vT + 2}, v{vB}, s{sMB}
    s_waitcnt lgkmcnt(0)
    s_barrier
    """)
    for d in range(3):
        for jt in range(5):
            a(f"ds_read_b128 {vr(AF + 20 + d * 20 + jt * 4, 4)}, v{vR + d} offset:{jt * 1024}")
    for d in range(3):
        a(f"s_waitcnt lgkmcnt({10 - 5 * d})")
        for r in range(20):
            a(f"v_add_f32 v{AF + r}, v{AF + r}, v{AF + 20 + d * 20 + r}")
    for jt in range(5):
        b = AF + 4 * jt
        a(f"""
        v_cvt_pk_bf16_f32 v{b}, v{b}, v{b + 1}
        v_cvt_pk_bf16_f32 v{b + 1}, v{b + 2}, v{b + 3}
        ds_write_b64 v{vT + 2}, {vr(b, 2)} offset:{16384 + 32 * jt}
        """)
    a("s_waitcnt lgkmcnt(0)")
    for i in range(3):
        a(f"ds_read_b128 {vr(AF + 20 + 4 * i, 4)}, v{vT + 3} offset:{16384 + 1024 * i}")
    for i in range(3):
        a(f"s_waitcnt lgkmcnt({2 - i})")
        if i == 2:
            a("s_mov_b32 exec_hi, 0")
        a(f"buffer_store_dwordx4 {vr(AF + 20 + 4 * i, 4)}, v{vO + i}, {sr(S_OUT, 4)}, s{sO} offen{ST}")
    prof_store(a, 2, S_WS, sWV, 4)
    dbgt_end(a, 2, sWV)
    a("""
    L_k3_done:
    s_endpgm
    """)


def desc(a):
    kernel_desc(a, NAME, NV + 80, 48, NV)
```

```python
import sys
sys.path.insert(0, 'gen')
from common import *
import k1, k2, k3

HDR = open('gated_mix__mha_block__grouped_kv_mqa__prompt.s.ref').read().split('; Override launch geometry')[0]

def build():
    a = Asm()
    out = HDR
    out += "; Generated by gen/gen.py (hand-written generator scripts): projections -> attention -> output projection\n"
    out += f"; @launch kernel={k1.NAME} grid=(256,1,1) block=(512,1,1) lds={k1.LDS_BYTES}\n"
    out += f"; @launch kernel={k2.NAME} grid=(256,1,1) block=(512,1,1) lds={k2.LDS_BYTES}\n"
    out += f"; @launch kernel={k3.NAME} grid=(256,1,1) block=(256,1,1) lds={k3.LDS_BYTES}\n"
    a('.amdgcn_target "amdgcn-amd-amdhsa--gfx950"')
    a('.text')
    for k in (k1, k2, k3):
        k.gen(a)
    a('.section .rodata,"a"')
    for k in (k1, k2, k3):
        k.desc(a)
    txt = a.text()
    import os, re
    fl = os.environ.get('STFLAG', '')
    if fl:
        txt = re.sub(r'^(\s*buffer_store_dword\S* .*?offen(?: offset:\d+)?)$', lambda m: m.group(1) + ' ' + fl, txt, flags=re.M)
    return out + txt

if __name__ == '__main__':
    dst = sys.argv[1] if len(sys.argv) > 1 else 'gated_mix__mha_block__grouped_kv_mqa__prompt.s'
    open(dst, 'w').write(build())
    print('wrote', dst)
```

```python
import struct


def f2h(x):
    return "0x%08x" % struct.unpack("<I", struct.pack("<f", x))[0]


Q_HEAD_STRIDE = 64 * 1280
KV_HEAD_STRIDE = 65 * 2560
WS_Q = 0
WS_KV = 64 * Q_HEAD_STRIDE
WS_NQ = 0xA40000
WS_NK = 0xAC0000
WS_G = 0xB10000
WS_O = 0xC00000
WS_BYTES = 0x1200000

KA_X, KA_WQKV, KA_WOA, KA_BX, KA_WQB, KA_WKB, KA_WVB, KA_WOB, KA_GATE, KA_OUT, KA_DBG, KA_WS = [8 * i for i in range(12)]


class Asm:
    def __init__(self):
        self.lines = []

    def __call__(self, s):
        for ln in s.strip("\n").split("\n"):
            ln = ln.strip()
            if ln:
                self.lines.append(ln if ln.endswith(":") or ln.startswith(".") else "    " + ln)

    def c(self, s):
        self.lines.append("    ; " + s)

    def text(self):
        return "\n".join(self.lines) + "\n"


def vr(base, n=1):
    return f"v{base}" if n == 1 else f"v[{base}:{base + n - 1}]"


def ar(base, n=1):
    return f"a{base}" if n == 1 else f"a[{base}:{base + n - 1}]"


def sr(base, n=1):
    return f"s{base}" if n == 1 else f"s[{base}:{base + n - 1}]"


def srd(a, d, lo, hi, nbytes):
    a(f"s_mov_b32 s{d}, s{lo}")
    a(f"s_and_b32 s{d + 1}, s{hi}, 0xffff")
    a(f"s_mov_b32 s{d + 2}, {nbytes}")
    a(f"s_mov_b32 s{d + 3}, 0x00020000")


def kernel_header(a, name):
    a(f".globl {name}")
    a(".p2align 8")
    a(f".type {name},@function")
    a(f"{name}:")


def kernel_desc(a, name, nvgpr, nsgpr, accum):
    a(".p2align 6")
    a(f".amdhsa_kernel {name}")
    a(f"  .amdhsa_next_free_vgpr {nvgpr}")
    a(f"  .amdhsa_next_free_sgpr {100 if (PROF or DBGT) else nsgpr}")
    a(f"  .amdhsa_accum_offset {accum}")
    a("  .amdhsa_group_segment_fixed_size 0")
    a("  .amdhsa_kernarg_size 96")
    a("  .amdhsa_user_sgpr_count 2")
    a("  .amdhsa_user_sgpr_kernarg_segment_ptr 1")
    a("  .amdhsa_system_sgpr_workgroup_id_x 1")
    a(".end_amdhsa_kernel")


def interleave(main, extra, start=0, every=1):
    out = []
    ei = 0
    for i, m in enumerate(main):
        out.append(m)
        if i >= start and (i - start) % every == 0 and ei < len(extra):
            e = extra[ei]
            out.extend(e if isinstance(e, list) else [e])
            ei += 1
    while ei < len(extra):
        e = extra[ei]
        out.extend(e if isinstance(e, list) else [e])
        ei += 1
    return out


import os
PROF = os.environ.get("PROF", "0") == "1"
WS_PROF = 0x1100000


def stamp(a, i):
    if not PROF:
        return
    a(f"s_memtime s[{80 + 2 * i}:{81 + 2 * i}]")
    if i == 0:
        a("s_memrealtime s[92:93]")


def prof_store(a, kidx, srd_ws, swv, nst):
    if not PROF:
        return
    a("s_memrealtime s[94:95]")
    a(f"s_memtime s[{80 + 2 * nst}:{81 + 2 * nst}]")
    a("s_waitcnt lgkmcnt(0)")
    a("s_getreg_b32 s90, hwreg(HW_REG_XCC_ID)")
    for i in range(6):
        a(f"v_mov_b32 v{2 + i}, s{80 + 2 * i}")
    a("v_mov_b32 v8, s92")
    a("v_mov_b32 v9, s94")
    a("s_lshl_b32 s96, s2, 3")
    a(f"s_add_u32 s96, s96, s{swv}")
    a("s_lshl_b32 s96, s96, 5")
    a(f"s_add_u32 s96, s96, {WS_PROF + kidx * 0x10000}")
    a("v_mov_b32 v0, 0")
    a("s_mov_b64 exec, 1")
    a(f"buffer_store_dwordx4 v[2:5], v0, s[{srd_ws}:{srd_ws + 3}], s96 offen")
    a(f"buffer_store_dwordx4 v[6:9], v0, s[{srd_ws}:{srd_ws + 3}], s96 offen offset:16")


def tl(a, vreg, sidx):
    if not PROF:
        return
    a("s_memtime s[98:99]")
    a("s_waitcnt lgkmcnt(0)")
    a(f"s_mov_b32 m0, s{sidx}")
    a("s_nop 0")
    a(f"v_writelane_b32 v{vreg}, s98, m0")
    a(f"s_add_u32 s{sidx}, s{sidx}, 1")


def tl_store(a, vreg, srd_ws, swv, vtmp):
    if not PROF:
        return
    a("s_lshl_b32 s96, s2, 3")
    a(f"s_add_u32 s96, s96, s{swv}")
    a("s_lshl_b32 s96, s96, 8")
    a(f"s_add_u32 s96, s96, {WS_PROF + 0x40000}")
    a(f"v_mbcnt_lo_u32_b32 v{vtmp}, -1, 0")
    a(f"v_mbcnt_hi_u32_b32 v{vtmp}, -1, v{vtmp}")
    a(f"v_lshlrev_b32 v{vtmp}, 2, v{vtmp}")
    a(f"buffer_store_dword v{vreg}, v{vtmp}, s[{srd_ws}:{srd_ws + 3}], s96 offen")


DBGT = os.environ.get("DBGT", "0") == "1"


def dbgt_start(a):
    if not DBGT:
        return
    a("s_memrealtime s[92:93]")
    a(f"s_load_dwordx2 s[88:89], s[0:1], {KA_DBG}")


def dbgt_end(a, k):
    if not DBGT:
        return
    a("s_memrealtime s[94:95]")
    a("s_waitcnt lgkmcnt(0)")
    a(f"s_sub_u32 s88, s88, {512 * k}")
    a("s_subb_u32 s89, s89, 0")
    a("s_not_b32 s96, s92")
    a("s_not_b32 s97, s94")
    a("v_mov_b32 v2, s96")
    a("v_mov_b32 v3, s94")
    a("v_mov_b32 v4, s92")
    a("v_mov_b32 v5, s97")
    a("v_mov_b32 v0, 0")
    a("s_mov_b64 exec, 1")
    a(f"global_atomic_umax v0, v2, s[88:89] offset:{16 * k}")
    a(f"global_atomic_umax v0, v4, s[88:89] offset:{16 * k + 4}")
    a(f"global_atomic_umax v0, v5, s[88:89] offset:{16 * k + 8}")
    a(f"global_atomic_umax v0, v3, s[88:89] offset:{16 * k + 12}")
```

```python
import struct


def f2h(x):
    return "0x%08x" % struct.unpack("<I", struct.pack("<f", x))[0]


Q_HEAD_STRIDE = 64 * 1280
KV_HEAD_STRIDE = 65 * 2560
WS_Q = 0
WS_KV = 64 * Q_HEAD_STRIDE
WS_NQ = 0xA40000
WS_NK = 0xAC0000
WS_G = 0xB10000
WS_O = 0xC00000
WS_BYTES = 0x1200000

KA_X, KA_WQKV, KA_WOA, KA_BX, KA_WQB, KA_WKB, KA_WVB, KA_WOB, KA_GATE, KA_OUT, KA_DBG, KA_WS = [8 * i for i in range(12)]


class Asm:
    def __init__(self):
        self.lines = []

    def __call__(self, s):
        for ln in s.strip("\n").split("\n"):
            ln = ln.strip()
            if ln:
                self.lines.append(ln if ln.endswith(":") or ln.startswith(".") else "    " + ln)

    def c(self, s):
        self.lines.append("    ; " + s)

    def text(self):
        return "\n".join(self.lines) + "\n"


def vr(base, n=1):
    return f"v{base}" if n == 1 else f"v[{base}:{base + n - 1}]"


def ar(base, n=1):
    return f"a{base}" if n == 1 else f"a[{base}:{base + n - 1}]"


def sr(base, n=1):
    return f"s{base}" if n == 1 else f"s[{base}:{base + n - 1}]"


def srd(a, d, lo, hi, nbytes):
    a(f"s_mov_b32 s{d}, s{lo}")
    a(f"s_and_b32 s{d + 1}, s{hi}, 0xffff")
    a(f"s_mov_b32 s{d + 2}, {nbytes}")
    a(f"s_mov_b32 s{d + 3}, 0x00020000")


def kernel_header(a, name):
    a(f".globl {name}")
    a(".p2align 8")
    a(f".type {name},@function")
    a(f"{name}:")


def kernel_desc(a, name, nvgpr, nsgpr, accum):
    a(".p2align 6")
    a(f".amdhsa_kernel {name}")
    a(f"  .amdhsa_next_free_vgpr {nvgpr}")
    a(f"  .amdhsa_next_free_sgpr {100 if (PROF or DBGT) else nsgpr}")
    a(f"  .amdhsa_accum_offset {accum}")
    a("  .amdhsa_group_segment_fixed_size 0")
    a("  .amdhsa_kernarg_size 96")
    a("  .amdhsa_user_sgpr_count 2")
    a("  .amdhsa_user_sgpr_kernarg_segment_ptr 1")
    a("  .amdhsa_system_sgpr_workgroup_id_x 1")
    a(".end_amdhsa_kernel")


def interleave(main, extra, start=0, every=1):
    out = []
    ei = 0
    for i, m in enumerate(main):
        out.append(m)
        if i >= start and (i - start) % every == 0 and ei < len(extra):
            e = extra[ei]
            out.extend(e if isinstance(e, list) else [e])
            ei += 1
    while ei < len(extra):
        e = extra[ei]
        out.extend(e if isinstance(e, list) else [e])
        ei += 1
    return out


import os
PROF = os.environ.get("PROF", "0") == "1"
WS_PROF = 0x1100000


def stamp(a, i):
    if not PROF:
        return
    a(f"s_memtime s[{80 + 2 * i}:{81 + 2 * i}]")
    if i == 0:
        a("s_memrealtime s[92:93]")


def prof_store(a, kidx, srd_ws, swv, nst):
    if not PROF:
        return
    a("s_memrealtime s[94:95]")
    a(f"s_memtime s[{80 + 2 * nst}:{81 + 2 * nst}]")
    a("s_waitcnt lgkmcnt(0)")
    a("s_getreg_b32 s90, hwreg(HW_REG_XCC_ID)")
    for i in range(6):
        a(f"v_mov_b32 v{2 + i}, s{80 + 2 * i}")
    a("v_mov_b32 v8, s92")
    a("v_mov_b32 v9, s94")
    a("s_lshl_b32 s96, s2, 3")
    a(f"s_add_u32 s96, s96, s{swv}")
    a("s_lshl_b32 s96, s96, 5")
    a(f"s_add_u32 s96, s96, {WS_PROF + kidx * 0x10000}")
    a("v_mov_b32 v0, 0")
    a("s_mov_b64 exec, 1")
    a(f"buffer_store_dwordx4 v[2:5], v0, s[{srd_ws}:{srd_ws + 3}], s96 offen")
    a(f"buffer_store_dwordx4 v[6:9], v0, s[{srd_ws}:{srd_ws + 3}], s96 offen offset:16")


def tl(a, vreg, sidx):
    if not PROF:
        return
    a("s_memtime s[98:99]")
    a("s_waitcnt lgkmcnt(0)")
    a(f"s_mov_b32 m0, s{sidx}")
    a("s_nop 0")
    a(f"v_writelane_b32 v{vreg}, s98, m0")
    a(f"s_add_u32 s{sidx}, s{sidx}, 1")


def tl_store(a, vreg, srd_ws, swv, vtmp):
    if not PROF:
        return
    a("s_lshl_b32 s96, s2, 3")
    a(f"s_add_u32 s96, s96, s{swv}")
    a("s_lshl_b32 s96, s96, 8")
    a(f"s_add_u32 s96, s96, {WS_PROF + 0x40000}")
    a(f"v_mbcnt_lo_u32_b32 v{vtmp}, -1, 0")
    a(f"v_mbcnt_hi_u32_b32 v{vtmp}, -1, v{vtmp}")
    a(f"v_lshlrev_b32 v{vtmp}, 2, v{vtmp}")
    a(f"buffer_store_dword v{vreg}, v{vtmp}, s[{srd_ws}:{srd_ws + 3}], s96 offen")


DBGT = os.environ.get("DBGT", "0") == "1"


def dbgt_start(a):
    if not DBGT:
        return
    a("s_memrealtime s[92:93]")
    a(f"s_load_dwordx2 s[88:89], s[0:1], {KA_DBG}")


def dbgt_end(a, k, swv):
    if not DBGT:
        return
    a("s_memrealtime s[94:95]")
    a("s_waitcnt lgkmcnt(0)")
    a(f"s_cmp_lg_u32 s{swv}, 0")
    a(f"s_cbranch_scc1 L_dbgt{k}")
    a("s_cmp_eq_u32 s2, 133")
    a("s_cselect_b32 s96, 8, 0")
    a("s_cbranch_scc1 L_dbgt%da" % k)
    a("s_cmp_lg_u32 s2, 0")
    a(f"s_cbranch_scc1 L_dbgt{k}")
    a("L_dbgt%da:" % k)
    a(f"s_sub_u32 s88, s88, {512 * k}")
    a("s_subb_u32 s89, s89, 0")
    a("v_mov_b32 v2, s92")
    a("v_mov_b32 v3, s94")
    a("v_mov_b32 v0, s96")
    a("s_mov_b64 exec, 1")
    for j in range(3):
        a(f"global_store_dwordx2 v0, v[2:3], s[88:89] offset:{16 * k + 512 * j}")
    a(f"L_dbgt{k}:")
```

```python
import struct


def f2h(x):
    return "0x%08x" % struct.unpack("<I", struct.pack("<f", x))[0]


Q_HEAD_STRIDE = 64 * 1280
KV_HEAD_STRIDE = 65 * 2560
WS_Q = 0
WS_KV = 64 * Q_HEAD_STRIDE
WS_NQ = 0xA40000
WS_NK = 0xAC0000
WS_G = 0xB10000
WS_CNT = 0xB20000
WS_O = 0xC00000
WS_BYTES = 0x1200000

KA_X, KA_WQKV, KA_WOA, KA_BX, KA_WQB, KA_WKB, KA_WVB, KA_WOB, KA_GATE, KA_OUT, KA_DBG, KA_WS = [8 * i for i in range(12)]


class Asm:
    def __init__(self):
        self.lines = []

    def __call__(self, s):
        for ln in s.strip("\n").split("\n"):
            ln = ln.strip()
            if ln:
                self.lines.append(ln if ln.endswith(":") or ln.startswith(".") else "    " + ln)

    def c(self, s):
        self.lines.append("    ; " + s)

    def text(self):
        return "\n".join(self.lines) + "\n"


def vr(base, n=1):
    return f"v{base}" if n == 1 else f"v[{base}:{base + n - 1}]"


def ar(base, n=1):
    return f"a{base}" if n == 1 else f"a[{base}:{base + n - 1}]"


def sr(base, n=1):
    return f"s{base}" if n == 1 else f"s[{base}:{base + n - 1}]"


def srd(a, d, lo, hi, nbytes):
    a(f"s_mov_b32 s{d}, s{lo}")
    a(f"s_and_b32 s{d + 1}, s{hi}, 0xffff")
    a(f"s_mov_b32 s{d + 2}, {nbytes}")
    a(f"s_mov_b32 s{d + 3}, 0x00020000")


def kernel_header(a, name):
    a(f".globl {name}")
    a(".p2align 8")
    a(f".type {name},@function")
    a(f"{name}:")


def kernel_desc(a, name, nvgpr, nsgpr, accum):
    a(".p2align 6")
    a(f".amdhsa_kernel {name}")
    a(f"  .amdhsa_next_free_vgpr {nvgpr}")
    a(f"  .amdhsa_next_free_sgpr {100 if (PROF or DBGT) else nsgpr}")
    a(f"  .amdhsa_accum_offset {accum}")
    a("  .amdhsa_group_segment_fixed_size 0")
    a("  .amdhsa_kernarg_size 96")
    a("  .amdhsa_user_sgpr_count 2")
    a("  .amdhsa_user_sgpr_kernarg_segment_ptr 1")
    a("  .amdhsa_system_sgpr_workgroup_id_x 1")
    a(".end_amdhsa_kernel")


def interleave(main, extra, start=0, every=1):
    out = []
    ei = 0
    for i, m in enumerate(main):
        out.append(m)
        if i >= start and (i - start) % every == 0 and ei < len(extra):
            e = extra[ei]
            out.extend(e if isinstance(e, list) else [e])
            ei += 1
    while ei < len(extra):
        e = extra[ei]
        out.extend(e if isinstance(e, list) else [e])
        ei += 1
    return out


import os
PROF = os.environ.get("PROF", "0") == "1"
WS_PROF = 0x1100000


def stamp(a, i):
    if not PROF:
        return
    a(f"s_memtime s[{80 + 2 * i}:{81 + 2 * i}]")
    if i == 0:
        a("s_memrealtime s[92:93]")


def prof_store(a, kidx, srd_ws, swv, nst, keep5=False):
    if not PROF:
        return
    a("s_memrealtime s[94:95]")
    if keep5:
        a("s_memtime s[98:99]")
        a("s_waitcnt lgkmcnt(0)")
        a("s_mov_b32 s82, s98")
    else:
        a(f"s_memtime s[{80 + 2 * nst}:{81 + 2 * nst}]")
        a("s_waitcnt lgkmcnt(0)")
        a("s_getreg_b32 s90, hwreg(HW_REG_XCC_ID)")
    for i in range(6):
        a(f"v_mov_b32 v{2 + i}, s{80 + 2 * i}")
    a("v_mov_b32 v8, s92")
    a("v_mov_b32 v9, s94")
    a("s_lshl_b32 s96, s2, 3")
    a(f"s_add_u32 s96, s96, s{swv}")
    a("s_lshl_b32 s96, s96, 5")
    a(f"s_add_u32 s96, s96, {WS_PROF + kidx * 0x10000}")
    a("v_mov_b32 v0, 0")
    a("s_mov_b64 exec, 1")
    a(f"buffer_store_dwordx4 v[2:5], v0, s[{srd_ws}:{srd_ws + 3}], s96 offen")
    a(f"buffer_store_dwordx4 v[6:9], v0, s[{srd_ws}:{srd_ws + 3}], s96 offen offset:16")


def tl(a, vreg, sidx):
    if not PROF:
        return
    a("s_memtime s[98:99]")
    a("s_waitcnt lgkmcnt(0)")
    a(f"s_mov_b32 m0, s{sidx}")
    a("s_nop 0")
    a(f"v_writelane_b32 v{vreg}, s98, m0")
    a(f"s_add_u32 s{sidx}, s{sidx}, 1")


def tl_store(a, vreg, srd_ws, swv, vtmp):
    if not PROF:
        return
    a("s_lshl_b32 s96, s2, 3")
    a(f"s_add_u32 s96, s96, s{swv}")
    a("s_lshl_b32 s96, s96, 8")
    a(f"s_add_u32 s96, s96, {WS_PROF + 0x40000}")
    a(f"v_mbcnt_lo_u32_b32 v{vtmp}, -1, 0")
    a(f"v_mbcnt_hi_u32_b32 v{vtmp}, -1, v{vtmp}")
    a(f"v_lshlrev_b32 v{vtmp}, 2, v{vtmp}")
    a(f"buffer_store_dword v{vreg}, v{vtmp}, s[{srd_ws}:{srd_ws + 3}], s96 offen")


DBGT = os.environ.get("DBGT", "0") == "1"


def dbgt_start(a):
    if not DBGT:
        return
    a("s_memrealtime s[92:93]")
    a(f"s_load_dwordx2 s[88:89], s[0:1], {KA_DBG}")


def dbgt_end(a, k, swv):
    if not DBGT:
        return
    a("s_memrealtime s[94:95]")
    a("s_waitcnt lgkmcnt(0)")
    a(f"s_cmp_lg_u32 s{swv}, 0")
    a(f"s_cbranch_scc1 L_dbgt{k}")
    a("s_cmp_eq_u32 s2, 133")
    a("s_cselect_b32 s96, 8, 0")
    a("s_cbranch_scc1 L_dbgt%da" % k)
    a("s_cmp_lg_u32 s2, 0")
    a(f"s_cbranch_scc1 L_dbgt{k}")
    a("L_dbgt%da:" % k)
    a(f"s_sub_u32 s88, s88, {512 * k}")
    a("s_subb_u32 s89, s89, 0")
    a("v_mov_b32 v2, s92")
    a("v_mov_b32 v3, s94")
    a("v_mov_b32 v0, s96")
    a("s_mov_b64 exec, 1")
    for j in range(3):
        a(f"global_store_dwordx2 v0, v[2:3], s[88:89] offset:{16 * k + 512 * j}")
    a(f"L_dbgt{k}:")
```

```python
import math
import os
from common import *

NAME = "gmix_proj_kernel"
NSLOT = 4
SLOT = 39424
NCHUNK = 10
LDS_BYTES = NSLOT * SLOT
QSCALE = (20 ** -0.5) * math.log2(math.e)
ST = " " + os.environ.get("K1ST", "sc1")

S_X, S_W, S_E, S_WS, S_GW = 20, 24, 28, 32, 36
sRB, sCB, sWV, sWR, sWC, sROT, sLDW = 40, 41, 42, 43, 44, 45, 46
sKX, sKW, sKE, sMX, sMW, sME = 47, 48, 49, 50, 51, 52
sDLT = 53
sEM = 54
sT0, sT1, sT2, sT3 = 56, 57, 58, 59
sDST, sHS, sTS, sNB = 60, 61, 62, 63
sSC = 64
sSG = 66
sLDW64, sGATE = 70, 71
sQ16 = 72
sR16 = 74
sSLOT, sJ, sLW, sCNT = 76, 77, 78, 79
sA, sB_, sC = 4, 8, 12
sEA, sEB, sEC = 20, 21, 22

vLANE = 1
vX, vW, vE = 16, 20, 25
vXA, vWBm, vWBl, vWE = 26, 28, 29, 30
vG0, vG1 = 36, 37
vLm, vLl, vLn, vLk, vLm2 = 38, 39, 40, 41, 42
vVo = 43
SETS = [48, 88]
ACC = 128
ACCE = 208
GT = 212


def acc(i, jt):
    return ACC + (i * 5 + jt) * 4


def dma_chunk(a):
    a(f"s_add_u32 s{sT0}, s{sMX}, s{sSLOT}")
    a(f"s_add_u32 s{sT1}, s{sMW}, s{sSLOT}")
    a(f"s_add_u32 s{sT2}, s{sME}, s{sSLOT}")
    for i in range(4):
        a(f"s_add_u32 m0, s{sT0}, {i * 1024}")
        a("s_nop 0")
        a(f"buffer_load_dwordx4 v{vX + i}, {sr(S_X, 4)}, s{sKX} offen lds")
    for i in range(5):
        a(f"s_add_u32 m0, s{sT1}, {16384 + i * 1024}")
        a("s_nop 0")
        a(f"buffer_load_dwordx4 v{vW + i}, {sr(S_W, 4)}, s{sKW} offen lds")
    a(f"""
    s_add_u32 m0, s{sT2}, 36864
    s_mov_b64 exec, {sr(sEM, 2)}
    buffer_load_dwordx4 v{vE}, {sr(S_E, 4)}, s{sKE} offen lds
    s_mov_b64 exec, -1
    s_add_u32 s{sKX}, s{sKX}, 128
    s_add_u32 s{sKW}, s{sKW}, s{sLDW64}
    s_add_u32 s{sKE}, s{sKE}, 2560
    s_cmp_eq_u32 s{sKX}, 1280
    s_cmov_b32 s{sKX}, 0
    s_cmov_b32 s{sKW}, 0
    s_cmov_b32 s{sKE}, 0
    s_add_u32 s{sSLOT}, s{sSLOT}, {SLOT}
    s_cmp_eq_u32 s{sSLOT}, {NSLOT * SLOT}
    s_cmov_b32 s{sSLOT}, 0
    """)


def frag_reads(ks, st, vtype):
    b = SETS[st]
    r = []
    for i in range(4):
        r.append(f"ds_read_b128 {vr(b + 4 * i, 4)}, v{vXA + ks} offset:{i * 2048}")
    for jt in range(5):
        for jh in range(2):
            if vtype:
                reg, off = vWBm, 32 * jt
            elif jt < 4:
                reg, off = vWBm, 40 * jt
            else:
                reg, off = vWBl, 0
            r.append(f"ds_read_b64_tr_b16 {vr(b + 16 + 4 * jt + 2 * jh, 2)}, v{reg} offset:{ks * 5120 + jh * 2560 + off}")
    for jh in range(2):
        r.append(f"ds_read_b64_tr_b16 {vr(b + 36 + 2 * jh, 2)}, v{vWE} offset:{ks * 1280 + jh * 160}")
    return r


def mfmas(st, vtype):
    b = SETS[st]
    m = []
    for jt in range(5):
        for i in range(4):
            x, w = vr(b + 4 * i, 4), vr(b + 16 + 4 * jt, 4)
            A, B = (x, w) if vtype else (w, x)
            m.append(f"v_mfma_f32_16x16x32_bf16 {vr(acc(i, jt), 4)}, {A}, {B}, {vr(acc(i, jt), 4)}")
    x, w = vr(b, 4), vr(b + 36, 4)
    A, B = (x, w) if vtype else (w, x)
    m.append(f"v_mfma_f32_16x16x32_bf16 {vr(ACCE, 4)}, {A}, {B}, {vr(ACCE, 4)}")
    return m


def main_loop(a, vtype):
    lbl = "L_k1_loop_v" if vtype else "L_k1_loop_q"
    stamp(a, 1)
    a("s_barrier")
    stamp(a, 2)
    for ln in frag_reads(0, 0, vtype):
        a(ln)
    a(f"s_mov_b32 s{sCNT}, 0")
    a(".p2align 6")
    a(f"{lbl}:")
    a(f"""
    s_and_b32 s{sT0}, s{sCNT}, 3
    s_cmp_eq_u32 s{sT0}, 3
    s_mov_b32 s{sDLT}, {SLOT}
    s_cmov_b32 s{sDLT}, {(-3 * SLOT) & 0xffffffff}
    s_add_u32 s{sCNT}, s{sCNT}, 1
    s_waitcnt lgkmcnt(0)
    """)
    adv = [f"v_add_u32 v{r}, s{sDLT}, v{r}" for r in (vXA, vXA + 1, vWBm, vWE) + (() if vtype else (vWBl,))]
    ex = [[x] for x in frag_reads(1, 1, vtype)] + [[x] for x in adv]
    for ln in interleave(mfmas(0, vtype), ex):
        a(ln)
    a("s_waitcnt lgkmcnt(0)")
    a("s_barrier")
    for ln in interleave(mfmas(1, vtype), frag_reads(0, 0, vtype)):
        a(ln)
    a(f"s_cmp_lt_u32 s{sCNT}, {NCHUNK}")
    a(f"s_cbranch_scc1 {lbl}")
    a("s_nop 7")
    stamp(a, 3)


def rowmax(a, r):
    for k in (8, 4, 2, 1):
        a("s_nop 1")
        a(f"v_max_f32_dpp v{r}, v{r}, v{r} row_ror:{k} row_mask:0xf bank_mask:0xf")


def loader(a):
    a.c("X DMA voffsets")
    a(f"""
    v_lshrrev_b32 v2, 3, v{vLANE}
    v_and_b32 v3, 7, v{vLANE}
    v_xor_b32 v3, v3, v2
    v_lshlrev_b32 v3, 4, v3
    v_mul_u32_u24 v2, 1280, v2
    v_add_u32 v2, v2, v3
    s_lshl_b32 s{sT1}, s{sRB}, 7
    """)
    for g in range(2):
        a(f"""
        s_cmp_eq_u32 s{sWC}, 0
        s_cselect_b32 s{sT0}, s{sSG + g}, s{sSG + 2 + g}
        s_lshl_b32 s{sT0}, s{sT0}, 4
        s_add_u32 s{sT0}, s{sT0}, s{sT1}
        s_mul_i32 s{sT0}, s{sT0}, 1280
        v_add_u32 v{vX + 2 * g}, s{sT0}, v2
        v_add_u32 v{vX + 2 * g + 1}, {8 * 1280}, v{vX + 2 * g}
        """)
    a.c("W DMA voffsets")
    a(f"""
    s_mul_i32 s{sT0}, s{sWR}, 160
    s_add_u32 s{sT0}, s{sT0}, s{sT3}
    s_lshl_b32 s{sT1}, s{sWC}, 5
    s_mul_i32 s{sT1}, s{sT1}, s{sLDW}
    s_add_u32 s{sT0}, s{sT0}, s{sT1}
    """)
    for i in range(5):
        a(f"""
        v_add_u32 v2, {64 * i}, v{vLANE}
        v_mul_u32_u24 v3, 205, v2
        v_lshrrev_b32 v3, 11, v3
        v_mul_u32_u24 v4, 10, v3
        v_sub_u32 v4, v2, v4
        v_lshrrev_b32 v5, 4, v3
        v_and_b32 v6, 3, v3
        v_lshl_add_u32 v5, v5, 2, v6
        v_bfe_u32 v6, v3, 2, 2
        v_lshl_add_u32 v5, v6, 3, v5
        v_mul_lo_u32 v5, v5, s{sLDW}
        v_lshlrev_b32 v4, 4, v4
        v_add3_u32 v{vW + i}, v5, v4, s{sT0}
        """)
    a.c("k-order stagger between workgroups that share tiles (speed hint only)")
    a(f"""
    v_lshlrev_b32 v{vE}, 4, v{vLANE}
    v_add_u32 v{vE}, s{sME}, v{vE}
    s_and_b32 s{sT0}, s{sRB}, 7
    s_add_u32 s{sT0}, s{sT0}, s{sROT}
    s_mul_i32 s{sT1}, s{sT0}, 52
    s_lshr_b32 s{sT1}, s{sT1}, 8
    s_mul_i32 s{sT1}, s{sT1}, 5
    s_sub_u32 s{sT0}, s{sT0}, s{sT1}
    s_lshl_b32 s{sT0}, s{sT0}, 1
    s_lshl_b32 s{sKX}, s{sT0}, 7
    s_mul_i32 s{sKW}, s{sT0}, s{sLDW64}
    s_mul_i32 s{sKE}, s{sT0}, 2560
    s_waitcnt lgkmcnt(0)
    """)
    srd(a, S_X, 4, 5, 2048 * 1280)
    a(f"""
    s_cmp_lt_u32 s{sCB}, 12
    s_cselect_b32 s{S_W}, s6, s8
    s_cselect_b32 s{S_W + 1}, s7, s9
    s_mov_b32 s{S_W + 2}, {640 * 1280}
    s_cmov_b32 s{S_W + 2}, {640 * 3840}
    s_and_b32 s{S_W + 1}, s{S_W + 1}, 0xffff
    s_mov_b32 s{S_W + 3}, 0x00020000
    s_lshr_b32 s{sT0}, s{sCB}, 2
    s_cmp_eq_u32 s{sT0}, 2
    s_cselect_b32 s{S_E}, s12, s10
    s_cselect_b32 s{S_E + 1}, s13, s11
    s_and_b32 s{S_E + 1}, s{S_E + 1}, 0xffff
    s_mov_b32 s{S_E + 2}, 25600
    s_mov_b32 s{S_E + 3}, 0x00020000
    """)
    if PROF:
        a("s_mov_b32 s97, 1")
        a("v_mov_b32 v52, 0")
        a("v_writelane_b32 v52, s80, 0")

    def sync(n):
        tl(a, 52, 97)
        a(f"s_waitcnt vmcnt({n})")
        tl(a, 52, 97)
        a("s_barrier")
        tl(a, 52, 97)
    a.c("loader loop")
    a(f"""
    L_k1_ld:
    s_cmp_lt_u32 s{sJ}, 2
    s_cbranch_scc1 L_k1_ld2
    """)
    sync(10)
    a("L_k1_ld2:")
    dma_chunk(a)
    a(f"""
    s_add_u32 s{sJ}, s{sJ}, 1
    s_cmp_lt_u32 s{sJ}, {NCHUNK}
    s_cbranch_scc1 L_k1_ld
    """)
    sync(10)
    sync(0)
    srd(a, S_WS, 16, 17, WS_BYTES)
    srd(a, S_GW, 14, 15, 1280)
    tl_store(a, 52, S_WS, sWV, 53)
    a(f"""
    s_cmp_lg_u32 s{sGATE}, 0
    s_cbranch_scc1 L_k1_gate
    s_barrier
    s_branch L_k1_done
    L_k1_gate:
    s_lshr_b32 s{sT0}, s{sCB}, 3
    s_lshl_b32 s{sT0}, s{sT0}, 2
    s_add_u32 s{sT0}, s{sT0}, s{sROT}
    s_lshl_b32 s{sT0}, s{sT0}, 4
    s_lshl_b32 s{sT1}, s{sRB}, 7
    s_add_u32 s{sT0}, s{sT0}, s{sT1}
    s_lshl_b32 s{sT1}, s{sLW}, 2
    s_add_u32 s{sT0}, s{sT0}, s{sT1}
    v_lshrrev_b32 v2, 4, v{vLANE}
    v_add_u32 v{vG1}, s{sT0}, v2
    v_and_b32 v3, 15, v{vLANE}
    v_lshlrev_b32 v3, 4, v3
    v_mul_u32_u24 v2, 1280, v{vG1}
    v_add_u32 v2, v2, v3
    """)
    for i in range(5):
        a(f"buffer_load_dwordx4 {vr(GT + 4 * i, 4)}, v2, {sr(S_X, 4)}, 0 offen offset:{256 * i}")
        a(f"buffer_load_dwordx4 {vr(GT + 20 + 4 * i, 4)}, v3, {sr(S_GW, 4)}, 0 offen offset:{256 * i}")
    a("""
    s_barrier
    v_mov_b32 v2, 0
    v_mov_b32 v3, 0
    s_waitcnt vmcnt(0)
    """)
    for i in range(20):
        x, g = GT + i, GT + 20 + i
        a(f"""
        v_lshlrev_b32 v4, 16, v{x}
        v_lshlrev_b32 v5, 16, v{g}
        v_and_b32 v6, 0xffff0000, v{x}
        v_and_b32 v7, 0xffff0000, v{g}
        v_mul_f32 v4, v4, v5
        v_mul_f32 v6, v6, v7
        v_cvt_pk_bf16_f32 v4, v4, v6
        v_lshlrev_b32 v5, 16, v4
        v_and_b32 v6, 0xffff0000, v4
        v_add_f32 v2, v2, v5
        v_add_f32 v3, v3, v6
        """)
    a("v_add_f32 v2, v2, v3")
    for k in (8, 4, 2, 1):
        a("s_nop 1")
        a(f"v_add_f32_dpp v2, v2, v2 row_ror:{k} row_mask:0xf bank_mask:0xf")
    a(f"""
    v_cvt_pk_bf16_f32 v2, v2, v2
    v_lshlrev_b32 v2, 16, v2
    v_mul_f32 v2, {f2h(-math.log2(math.e))}, v2
    v_exp_f32 v2, v2
    s_nop 0
    v_add_f32 v2, 1.0, v2
    v_rcp_f32 v2, v2
    s_nop 0
    v_cvt_pk_bf16_f32 v2, v2, v2
    v_lshlrev_b32 v{vG0}, 16, v2
    v_sub_f32 v2, 1.0, v{vG0}
    v_cvt_pk_bf16_f32 v2, v2, v2
    v_lshlrev_b32 v2, 16, v2
    v_lshlrev_b32 v3, 2, v{vG1}
    s_mov_b32 s{sT0}, {WS_G}
    s_mov_b32 s{sT1}, {WS_G + 8192}
    s_mov_b64 exec, {sr(sR16, 2)}
    buffer_store_dword v{vG0}, v3, {sr(S_WS, 4)}, s{sT0} offen{ST}
    buffer_store_dword v2, v3, {sr(S_WS, 4)}, s{sT1} offen{ST}
    s_branch L_k1_done
    """)


def qk_path(a):
    a.c("QK epilogue setup")
    a(f"""
    s_cmp_eq_u32 s{sT0}, 1
    s_mov_b32 s{sHS}, {Q_HEAD_STRIDE}
    s_cmov_b32 s{sHS}, {KV_HEAD_STRIDE}
    s_mov_b32 s{sTS}, 1280
    s_cmov_b32 s{sTS}, 2560
    s_cselect_b32 s{sSC}, 1.0, {f2h(QSCALE)}
    s_cselect_b32 s{sSC + 1}, 1.0, {f2h(QSCALE)}
    s_cselect_b32 s{sDST}, {WS_KV}, {WS_Q}
    s_mov_b32 s{sNB}, {WS_NQ}
    s_cmov_b32 s{sNB}, {WS_NK}
    s_cselect_b32 s{sT3}, 9, 13
    s_lshl_b32 s{sT1}, s{sROT}, 3
    s_cmp_eq_u32 s{sT0}, 3
    s_cselect_b32 s{sT2}, 32, 0
    s_add_u32 s{sT1}, s{sT1}, s{sT2}
    s_lshl_b32 s{sT2}, s{sWC}, 2
    s_add_u32 s{sT1}, s{sT1}, s{sT2}
    s_mul_i32 s{sT2}, s{sT1}, s{sHS}
    s_add_u32 s{sDST}, s{sDST}, s{sT2}
    s_lshl_b32 s{sT2}, s{sT1}, s{sT3}
    s_add_u32 s{sNB}, s{sNB}, s{sT2}
    v_lshrrev_b32 v4, 1, v3
    v_lshlrev_b32 v4, 9, v4
    v_and_b32 v5, 1, v3
    v_lshlrev_b32 v6, 4, v2
    v_add_u32 v4, v4, v6
    v_lshl_add_u32 v{vLm}, v5, 3, v4
    v_mul_lo_u32 v5, v5, s{sHS}
    v_add_u32 v{vLm2}, v4, v5
    v_mul_lo_u32 v4, v3, s{sHS}
    v_lshl_add_u32 v{vLl}, v2, 3, v4
    v_lshlrev_b32 v4, 13, v3
    v_lshl_add_u32 v{vLn}, v2, 2, v4
    v_lshlrev_b32 v{vLk}, 9, v3
    s_lshl_b32 s{sHS}, s{sHS}, 1
    """)
    KB = WS_KV + 32 * KV_HEAD_STRIDE
    for i in range(4):
        a(f"""
        s_lshr_b32 s{sT0}, s{sSG + i}, 1
        s_lshl_b32 s{sT1}, s{sRB}, 2
        s_add_u32 s{sT3}, s{sT0}, s{sT1}
        s_mul_i32 s{sT0}, s{sT3}, s{sTS}
        s_add_u32 s{sT0}, s{sT0}, s{sDST}
        s_and_b32 s{sT1}, s{sSG + i}, 1
        s_lshl_b32 s{sT2}, s{sT1}, 8
        s_add_u32 s{sA + i}, s{sT0}, s{sT2}
        s_lshl_b32 s{sT1}, s{sT1}, 7
        s_add_u32 s{sB_ + i}, s{sT0}, s{sT1}
        s_add_u32 s{sB_ + i}, s{sB_ + i}, 1024
        """)
        if i == 0:
            a(f"""
            s_mul_i32 s{sT0}, s{sT3}, 2560
            s_add_u32 s{sT0}, s{sT0}, {KB}
            s_add_u32 s{sEA}, s{sT0}, s{sT2}
            s_add_u32 s{sEB}, s{sT0}, s{sT1}
            s_add_u32 s{sEB}, s{sEB}, 1024
            """)
        a(f"""
        s_lshl_b32 s{sT2}, s{sRB}, 3
        s_add_u32 s{sT2}, s{sT2}, s{sSG + i}
        s_lshl_b32 s{sT2}, s{sT2}, 2
        s_lshl_b32 s{sT3}, s{sT2}, 4
        s_cmp_eq_u32 s{sTS}, 2560
        s_cselect_b32 s{sT3}, s{sT2}, s{sT3}
        s_add_u32 s{sC + i}, s{sT3}, s{sNB}
        """)
        if i == 0:
            a(f"""
            s_lshl_b32 s{sT3}, s{sWC}, 9
            s_add_u32 s{sEC}, s{sT2}, s{sT3}
            s_add_u32 s{sEC}, s{sEC}, {WS_NK + 32 * 512}
            """)
    main_loop(a, False)
    a.c("QK epilogue")
    for i in range(4):
        for jt in range(5):
            b = acc(i, jt)
            a(f"v_pk_mul_f32 {vr(b, 2)}, {vr(b, 2)}, {sr(sSC, 2)}")
            a(f"v_pk_mul_f32 {vr(b + 2, 2)}, {vr(b + 2, 2)}, {sr(sSC, 2)}")
        for jt in range(5):
            b = acc(i, jt)
            d = acc(i, jt & ~1) + 2 * (jt & 1)
            a(f"v_cvt_pk_bf16_f32 v{d}, v{b}, v{b + 1}")
            a(f"v_cvt_pk_bf16_f32 v{d + 1}, v{b + 2}, v{b + 3}")
        for jt in range(5):
            d = acc(i, jt & ~1) + 2 * (jt & 1)
            a(f"v_dot2_f32_bf16 v{2 + jt}, v{d}, v{d}, 0")
        for jt in range(5):
            d = acc(i, jt & ~1) + 2 * (jt & 1)
            a(f"v_dot2_f32_bf16 v{2 + jt}, v{d + 1}, v{d + 1}, v{2 + jt}")
        b4 = acc(i, 4)
        a(f"buffer_store_dwordx2 {vr(b4, 2)}, v{vLl}, {sr(S_WS, 4)}, s{sB_ + i} offen{ST}")
        for p in range(2):
            d = acc(i, 2 * p)
            a(f"v_permlane16_swap_b32 v{d}, v{d + 2}")
            a(f"v_permlane16_swap_b32 v{d + 1}, v{d + 3}")
            a(f"buffer_store_dwordx4 {vr(d, 4)}, v{vLm2}, {sr(S_WS, 4)}, s{sA + i} offen{ST}")
            if p == 0:
                a(f"s_add_u32 s{sA + i}, s{sA + i}, s{sHS}")
        a(f"""
        v_permlane16_swap_b32 v2, v3
        v_permlane16_swap_b32 v4, v5
        v_add_f32 v2, v2, v3
        v_add_f32 v4, v4, v5
        s_nop 1
        v_permlane32_swap_b32 v2, v4
        v_add_f32 v2, v2, v4
        v_add_f32 v{8 + i}, v2, v6
        """)
    a(f"""
    s_cmp_eq_u32 s{sTS}, 2560
    s_cbranch_scc1 L_k1_kn
    """)
    for i in range(4):
        a(f"buffer_store_dword v{8 + i}, v{vLn}, {sr(S_WS, 4)}, s{sC + i} offen{ST}")
    b = ACCE
    a.c("K_B extra tile (cb<4)")
    a(f"""
    s_cmp_ge_u32 s{sCB}, 4
    s_cbranch_scc1 L_k1_done
    v_cvt_pk_bf16_f32 v{b}, v{b}, v{b + 1}
    v_cvt_pk_bf16_f32 v{b + 1}, v{b + 2}, v{b + 3}
    v_dot2_f32_bf16 v2, v{b}, v{b}, 0
    v_dot2_f32_bf16 v2, v{b + 1}, v{b + 1}, v2
    s_cmp_eq_u32 s{sWC}, 1
    s_cbranch_scc1 L_k1_kb1
    buffer_store_dwordx2 {vr(b, 2)}, v{vLm}, {sr(S_WS, 4)}, s{sEA} offen{ST}
    s_nop 0
    v_mov_b32 v3, v2
    s_nop 1
    v_permlane16_swap_b32 v2, v3
    v_add_f32 v2, v2, v3
    v_mov_b32 v3, v2
    s_nop 1
    v_permlane32_swap_b32 v2, v3
    v_add_f32 v2, v2, v3
    s_branch L_k1_kb2
    L_k1_kb1:
    s_mov_b64 exec, {sr(sQ16, 2)}
    buffer_store_dwordx2 {vr(b, 2)}, v{vLl}, {sr(S_WS, 4)}, s{sEB} offen{ST}
    s_mov_b64 exec, -1
    L_k1_kb2:
    """)
    rowmax(a, 2)
    a(f"""
    s_mov_b64 exec, 1
    buffer_store_dword v2, v{vLk}, {sr(S_WS, 4)}, s{sEC} offen{ST}
    s_branch L_k1_done
    L_k1_kn:
    """)
    for k in (8, 4, 2, 1):
        for i in range(4):
            a(f"v_max_f32_dpp v{8 + i}, v{8 + i}, v{8 + i} row_ror:{k} row_mask:0xf bank_mask:0xf")
    a(f"s_mov_b64 exec, {sr(sR16, 2)}")
    for i in range(4):
        a(f"buffer_store_dword v{8 + i}, v{vLk}, {sr(S_WS, 4)}, s{sC + i} offen{ST}")
    a("s_branch L_k1_done")


def v_path(a):
    a.c("V epilogue setup")
    a(f"""
    v_and_b32 v4, 1, v3
    v_mul_u32_u24 v4, 320, v4
    v_lshrrev_b32 v5, 1, v3
    s_mov_b32 s{sHS}, {KV_HEAD_STRIDE}
    v_lshlrev_b32 v8, 4, v5
    v_lshl_add_u32 v9, v5, 3, v4
    """)
    for p in range(3):
        a(f"v_add_u32 v5, {32 * p}, v2")
        if p < 2:
            a("v_add_u32 v5, v5, v8")
        a(f"""
        v_mul_u32_u24 v6, 205, v5
        v_lshrrev_b32 v6, 12, v6
        v_mul_u32_u24 v7, 20, v6
        v_sub_u32 v7, v5, v7
        v_mul_lo_u32 v6, v6, s{sHS}
        v_lshlrev_b32 v7, 4, v7
        v_add3_u32 v{vVo + p}, v6, v7, v{4 if p < 2 else 9}
        """)
    a(f"""
    s_lshl_b32 s{sT0}, s{sWC}, 4
    v_add_u32 v5, s{sT0}, v2
    v_cmp_gt_u32 {sr(sSC, 2)}, 20, v5
    v_lshl_add_u32 v{vVo + 3}, v5, 4, v9
    s_lshl_b32 s{sT1}, s{sROT}, 3
    s_lshl_b32 s{sT2}, s{sWC}, 2
    s_add_u32 s{sT1}, s{sT1}, s{sT2}
    s_mul_i32 s{sDST}, s{sT1}, s{sHS}
    s_add_u32 s{sDST}, s{sDST}, {WS_KV + 2560 + 1280}
    """)
    for i in range(4):
        a(f"""
        s_lshr_b32 s{sT0}, s{sSG + i}, 1
        s_lshl_b32 s{sT1}, s{sRB}, 2
        s_add_u32 s{sT0}, s{sT0}, s{sT1}
        s_mul_i32 s{sT0}, s{sT0}, 2560
        s_and_b32 s{sT1}, s{sSG + i}, 1
        s_mul_i32 s{sT1}, s{sT1}, 640
        s_add_u32 s{sT0}, s{sT0}, s{sT1}
        s_add_u32 s{sA + i}, s{sT0}, s{sDST}
        """)
        if i == 0:
            a(f"s_add_u32 s{sEB}, s{sT0}, {WS_KV + 32 * KV_HEAD_STRIDE + 2560 + 1280}")
    main_loop(a, True)
    a.c("V epilogue")
    for i in range(4):
        for jt in range(5):
            b = acc(i, jt)
            d = acc(i, jt & ~1) + 2 * (jt & 1)
            a(f"v_cvt_pk_bf16_f32 v{d}, v{b}, v{b + 1}")
            a(f"v_cvt_pk_bf16_f32 v{d + 1}, v{b + 2}, v{b + 3}")
        a(f"buffer_store_dwordx2 {vr(acc(i, 4), 2)}, v{vVo + 2}, {sr(S_WS, 4)}, s{sA + i} offen{ST}")
        for p in range(2):
            d = acc(i, 2 * p)
            a(f"v_permlane32_swap_b32 v{d}, v{d + 2}")
            a(f"v_permlane32_swap_b32 v{d + 1}, v{d + 3}")
            a(f"buffer_store_dwordx4 {vr(d, 4)}, v{vVo + p}, {sr(S_WS, 4)}, s{sA + i} offen{ST}")
    b = ACCE
    a(f"""
    v_cvt_pk_bf16_f32 v{b}, v{b}, v{b + 1}
    v_cvt_pk_bf16_f32 v{b + 1}, v{b + 2}, v{b + 3}
    s_mov_b64 exec, {sr(sSC, 2)}
    buffer_store_dwordx2 {vr(b, 2)}, v{vVo + 3}, {sr(S_WS, 4)}, s{sEB} offen{ST}
    """)


def gen(a):
    kernel_header(a, NAME)
    a("""
    s_cmp_ge_u32 s2, 256
    s_cbranch_scc1 L_k1_exit
    """)
    stamp(a, 0)
    dbgt_start(a)
    a(f"""
    s_load_dwordx4 s[4:7], s[0:1], {KA_X}
    s_load_dwordx4 s[8:11], s[0:1], {KA_WQB}
    s_load_dwordx2 s[12:13], s[0:1], {KA_WVB}
    s_load_dwordx2 s[14:15], s[0:1], {KA_GATE}
    s_load_dwordx2 s[16:17], s[0:1], {KA_WS}
    v_lshrrev_b32 v2, 6, v0
    v_and_b32 v{vLANE}, 63, v0
    s_and_b32 s{sT0}, s2, 7
    s_lshr_b32 s{sT1}, s2, 3
    v_readfirstlane_b32 s{sWV}, v2
    s_and_b32 s{sRB}, s{sT0}, 1
    s_lshl_b32 s{sRB}, s{sRB}, 3
    s_and_b32 s{sT2}, s{sT1}, 7
    s_add_u32 s{sRB}, s{sRB}, s{sT2}
    s_lshr_b32 s{sCB}, s{sT0}, 1
    s_lshl_b32 s{sCB}, s{sCB}, 2
    s_lshr_b32 s{sROT}, s{sT1}, 3
    s_add_u32 s{sCB}, s{sCB}, s{sROT}
    s_and_b32 s{sLW}, s{sWV}, 3
    s_lshr_b32 s{sWR}, s{sLW}, 1
    s_and_b32 s{sWC}, s{sLW}, 1
    s_mov_b32 s{sR16}, 0x00010001
    s_mov_b32 s{sR16 + 1}, 0x00010001
    s_lshl_b32 s{sT1}, s{sWR}, 2
    """)
    for i in range(4):
        a(f"""
        s_add_u32 s{sT0}, s{sROT}, {i}
        s_and_b32 s{sT0}, s{sT0}, 3
        s_add_u32 s{sSG + i}, s{sT0}, s{sT1}
        """)
    a(f"""
    s_cmp_lt_u32 s{sWV}, 4
    s_cbranch_scc1 L_k1_compute
    s_mov_b32 s{sEM}, -1
    s_mov_b32 s{sEM + 1}, 0xff
    s_lshl_b32 s{sMX}, s{sLW}, 12
    s_mul_i32 s{sMW}, s{sLW}, 5120
    s_mul_i32 s{sME}, s{sLW}, 640
    s_mov_b32 s{sSLOT}, 0
    s_mov_b32 s{sJ}, 0
    s_cmp_lt_u32 s{sCB}, 12
    s_mov_b32 s{sLDW}, 1280
    s_cmov_b32 s{sLDW}, 3840
    s_cselect_b32 s{sT0}, 0, 12
    s_sub_u32 s{sT0}, s{sCB}, s{sT0}
    s_mul_i32 s{sT3}, s{sT0}, 320
    s_lshl_b32 s{sLDW64}, s{sLDW}, 6
    s_bfe_u32 s{sGATE}, s{sCB}, 0x10002
    """)
    loader(a)
    a("L_k1_compute:")
    a.c("fragment read addresses")
    a(f"""
    s_mov_b32 s{sQ16}, 0xffff
    s_mov_b32 s{sQ16 + 1}, 0
    v_and_b32 v2, 15, v{vLANE}
    v_lshrrev_b32 v3, 4, v{vLANE}
    v_and_b32 v4, 7, v{vLANE}
    v_xor_b32 v4, v4, v3
    v_lshlrev_b32 v4, 4, v4
    v_lshlrev_b32 v5, 7, v2
    s_lshl_b32 s{sT0}, s{sWR}, 13
    v_add3_u32 v{vXA}, v5, v4, s{sT0}
    v_xor_b32 v{vXA + 1}, 64, v{vXA}
    v_lshrrev_b32 v4, 2, v2
    v_and_b32 v5, 3, v{vLANE}
    v_lshl_add_u32 v6, v3, 2, v4
    v_mul_u32_u24 v6, 160, v6
    s_mul_i32 s{sT0}, s{sWC}, 10240
    s_add_u32 s{sT0}, s{sT0}, 16384
    v_add_u32 v6, s{sT0}, v6
    v_lshlrev_b32 v7, 3, v5
    v_add_u32 v{vWBm}, v6, v7
    v_mul_u32_u24 v8, 40, v5
    v_add3_u32 v{vWBl}, v6, v8, 32
    v_lshl_add_u32 v6, v3, 3, v4
    v_mul_u32_u24 v6, 40, v6
    v_mov_b32 v8, 32
    s_cmp_eq_u32 s{sWC}, 0
    s_cselect_b64 vcc, -1, 0
    v_add_u32 v6, 36864, v6
    v_cndmask_b32 v7, v8, v7, vcc
    v_add_u32 v{vWE}, v6, v7
    """)
    for r in range(ACC, ACCE + 4):
        a(f"v_mov_b32 v{r}, 0")
    a("s_waitcnt lgkmcnt(0)")
    srd(a, S_WS, 16, 17, WS_BYTES)
    a.c("zero the hand-off counters of the next launch")
    a(f"""
    s_or_b32 s{sT0}, s2, s{sWV}
    s_cmp_lg_u32 s{sT0}, 0
    s_cbranch_scc1 L_k1_nz
    v_lshlrev_b32 v4, 7, v2
    s_mov_b32 s{sT0}, {WS_CNT}
    buffer_store_dword v{ACC}, v4, {sr(S_WS, 4)}, s{sT0} offen sc1
    L_k1_nz:
    s_lshr_b32 s{sT0}, s{sCB}, 2
    s_cmp_eq_u32 s{sT0}, 2
    s_cbranch_scc1 L_k1_vtype
    """)
    qk_path(a)
    a("L_k1_vtype:")
    v_path(a)
    a("L_k1_done:")
    prof_store(a, 0, S_WS, sWV, 4)
    dbgt_end(a, 0, sWV)
    a("""
    L_k1_exit:
    s_endpgm
    """)


def desc(a):
    kernel_desc(a, NAME, 256, 96, 256)
```

```python
import math
import os
from common import *

NAME = "gmix_attn_kernel"
TPS = 16
NST = 64 // TPS
STAGE = TPS * 2560
WREG = 2 * STAGE
LDS_BYTES = 163840
DPW = STAGE // 1024 // 8
THR = float(os.environ.get('K2THR', 2.0 ** -40))
PSTR = 336
PQ = 64 * PSTR
SPIN = 400000

S_WS, S_W, S_OUT = 8, 44, 48
sWV, sBR, sKV, sQH, sQT = 12, 13, 14, 15, 16
sT0, sT1, sT2, sT3 = 17, 18, 19, 20
sPART = 21
sVM = 22
sLO = 24
sST, sDM, sDS, sDELTA, sRETRY = 26, 27, 28, 29, 30
sQ0, sQ1 = 31, 32
sKO = 33
sO0, sO1 = 36, 38
sWK, sWM, sRB, sCB = 52, 53, 54, 55
sA = 56
sCNT, sSH = 58, 59
NS = 64

vLANE = 1
vK0A, vK1A, vVA, vDMA = 2, 3, 4, 5
vQN = 6
vG = 8
vT = 10
Q = [16, 24]
F = [32, 48]
P = [64, 72]
M = [80, 96]
O = [112, 128]
S = [144, 160]
vW = 192
vW2 = 197
NV = 208
BS = [32, 52]
ACC = 72
AF = 112
vBlo, vBhi = 16, 17


def qk(u, fs):
    f = F[fs]
    return [f"v_mfma_f32_32x32x16_bf16 {vr(S[u], 16)}, {vr(f, 4)}, {vr(Q[u], 4)}, {vr(M[u], 16)}",
            f"v_mfma_f32_32x32x8_bf16 {vr(S[u], 16)}, {vr(f + 4, 2)}, {vr(Q[u] + 4, 2)}, {vr(S[u], 16)}"]


def pv(u, fs):
    f = F[fs]
    return [f"v_mfma_f32_32x32x16_bf16 {vr(O[u], 16)}, {vr(f + 8, 4)}, {vr(P[u], 4)}, {vr(O[u], 16)}",
            f"v_mfma_f32_32x32x16_bf16 {vr(O[u], 16)}, {vr(f + 12, 4)}, {vr(P[u] + 4, 4)}, {vr(O[u], 16)}"]


def freads(fs, off):
    f = F[fs]
    return [[f"ds_read_b128 {vr(f, 4)}, v{vK0A} offset:{off}",
             f"ds_read_b64 {vr(f + 4, 2)}, v{vK1A} offset:{off}",
             f"s_mov_b64 exec, {sr(sVM, 2)}",
             f"ds_read_b128 {vr(f + 8, 4)}, v{vVA} offset:{off}",
             f"ds_read_b128 {vr(f + 12, 4)}, v{vVA} offset:{off + 640}",
             "s_mov_b64 exec, -1"]]


def expcvt(a, u, j):
    for r in range(4):
        a(f"v_exp_f32 v{S[u] + 4 * j + r}, v{S[u] + 4 * j + r}")
    for r in range(2):
        a(f"v_cvt_pk_bf16_f32 v{P[u] + 2 * j + r}, v{S[u] + 4 * j + 2 * r}, v{S[u] + 4 * j + 2 * r + 1}")


def slot(a, ue, um, fs, extras):
    mm = qk(um, fs) + pv(um, fs)
    for j in range(4):
        a(mm[j])
        if j < len(extras):
            for ln in extras[j]:
                a(ln)
        expcvt(a, ue, j)


def dma_stage(a):
    for i in range(DPW):
        a(f"s_add_u32 m0, s{sDM}, {i * 1024}")
        if i:
            a(f"s_add_u32 s{sT0}, s{sDS}, {i * 1024}")
        else:
            a(f"s_mov_b32 s{sT0}, s{sDS}")
        a(f"buffer_load_dwordx4 v{vDMA}, {sr(S_WS, 4)}, s{sT0} offen lds")
    a(f"s_add_u32 s{sDS}, s{sDS}, {STAGE}")
    a(f"s_xor_b32 s{sDM}, s{sDM}, s{sKO}")


def dma_w(a, vbase, sm0):
    for i in range(5):
        a(f"s_add_u32 m0, s{sm0}, {i * 1024}")
        a("s_nop 0")
        a(f"buffer_load_dwordx4 v{vbase + i}, {sr(S_W, 4)}, s{sWK} offen lds")


def w_offsets(a, t):
    for i in range(5):
        a(f"""
        v_add_u32 v{t}, {64 * i}, v{vLANE}
        v_mul_u32_u24 v{t + 1}, 205, v{t}
        v_lshrrev_b32 v{t + 1}, 11, v{t + 1}
        v_mul_u32_u24 v{t + 2}, 10, v{t + 1}
        v_sub_u32 v{t + 2}, v{t}, v{t + 2}
        v_lshlrev_b32 v{t + 2}, 4, v{t + 2}
        v_lshrrev_b32 v{t + 3}, 4, v{t + 1}
        v_and_b32 v{t + 4}, 3, v{t + 1}
        v_bfe_u32 v{t + 5}, v{t + 1}, 2, 1
        v_bfe_u32 v{t + 6}, v{t + 1}, 3, 1
        v_bfe_u32 v{t + 7}, v{t + 1}, 2, 2
        v_lshl_add_u32 v{t + 7}, v{t + 7}, 1, v{t + 3}
        v_mul_u32_u24 v{t + 7}, 20, v{t + 7}
        v_add3_u32 v{t + 7}, v{t + 7}, v{t + 4}, 16
        v_mul_u32_u24 v{t + 7}, 1280, v{t + 7}
        v_add3_u32 v{vW2 + i}, v{t + 7}, v{t + 2}, s{sT2}
        v_mul_u32_u24 v{t}, 20, v{t + 6}
        v_lshl_add_u32 v{t}, v{t + 5}, 3, v{t}
        v_lshl_add_u32 v{t}, v{t + 3}, 2, v{t}
        v_add_u32 v{t}, v{t}, v{t + 4}
        v_mul_u32_u24 v{t}, 1280, v{t}
        v_add3_u32 v{vW + i}, v{t}, v{t + 2}, s{sT2}
        """)


def breads(ks, st):
    if ks < 4:
        reg, base = vBhi, ks * 20480
    elif ks < 8:
        reg, base = vBlo, (ks - 4) * 20480
    else:
        reg, base = vBhi, (ks - 8) * 20480
    r = []
    for jt in range(5):
        for jh in range(2):
            r.append(f"ds_read_b64_tr_b16 {vr(BS[st] + 4 * jt + 2 * jh, 2)}, v{reg} offset:{base + jh * 2560 + 32 * jt}")
    return r


def omfmas(ks, st):
    m = []
    for jt in range(5):
        for i in range(2):
            c = ACC + (i * 5 + jt) * 4
            m.append(f"v_mfma_f32_16x16x32_bf16 {vr(c, 4)}, {vr(BS[st] + 4 * jt, 4)}, {vr(AF + ks * 8 + 4 * i, 4)}, {vr(c, 4)}")
    return m


def gen(a):
    kernel_header(a, NAME)
    a("""
    s_cmp_ge_u32 s2, 256
    s_cbranch_scc1 L_k2_done
    """)
    stamp(a, 0)
    dbgt_start(a)
    a(f"""
    s_load_dwordx2 s[4:5], s[0:1], {KA_WS}
    s_load_dwordx2 s[6:7], s[0:1], {KA_WOA}
    s_load_dwordx2 s[40:41], s[0:1], {KA_WOB}
    s_load_dwordx2 s[42:43], s[0:1], {KA_OUT}
    v_lshrrev_b32 v{vT}, 6, v0
    v_and_b32 v{vLANE}, 63, v0
    s_and_b32 s{sRB}, s2, 7
    s_bfe_u32 s{sT1}, s2, 0x40003
    v_readfirstlane_b32 s{sWV}, v{vT}
    s_lshr_b32 s{sBR}, s2, 7
    s_lshl_b32 s{sT0}, s{sRB}, 2
    s_lshr_b32 s{sSH}, s{sT1}, 2
    s_add_u32 s{sT0}, s{sT0}, s{sSH}
    s_and_b32 s{sPART}, s{sT1}, 3
    s_lshl_b32 s{sT2}, s{sBR}, 5
    s_add_u32 s{sQH}, s{sT0}, s{sT2}
    s_cmp_eq_u32 s{sBR}, 0
    s_cselect_b32 s{sT3}, s{sT0}, 32
    s_mul_i32 s{sKV}, s{sT3}, {KV_HEAD_STRIDE}
    s_add_u32 s{sKV}, s{sKV}, {WS_KV}
    s_lshl_b32 s{sQT}, s{sPART}, 4
    s_lshl_b32 s{sT0}, s{sWV}, 1
    s_add_u32 s{sQT}, s{sQT}, s{sT0}
    s_mov_b32 s{sVM}, 0xfffff
    s_mov_b32 s{sVM + 1}, 0xfffff
    s_mov_b32 s{sLO}, -1
    s_mov_b32 s{sLO + 1}, 0
    s_mov_b32 s{sRETRY}, 0
    s_mul_i32 s{sQ0}, s{sQH}, {Q_HEAD_STRIDE}
    s_mul_i32 s{sT0}, s{sQT}, 1280
    s_add_u32 s{sQ0}, s{sQ0}, s{sT0}
    s_add_u32 s{sQ0}, s{sQ0}, {WS_Q}
    s_add_u32 s{sQ1}, s{sQ0}, 1280
    v_lshlrev_b32 v{vDMA}, 4, v{vLANE}
    v_and_b32 v{vT}, 31, v{vLANE}
    v_lshlrev_b32 v{vT + 1}, 3, v{vT}
    v_add_u32 v{vT + 1}, 1024, v{vT + 1}
    v_lshlrev_b32 v{vT + 2}, 2, v{vT}
    v_mov_b32 v{Q[0] + 4}, 0
    v_mov_b32 v{Q[0] + 5}, 0
    v_mov_b32 v{Q[1] + 4}, 0
    v_mov_b32 v{Q[1] + 5}, 0
    s_mul_i32 s{sDM}, s{sWV}, {DPW * 1024}
    s_add_u32 s{sKO}, s{sDM}, {STAGE}
    s_xor_b32 s{sKO}, s{sKO}, s{sDM}
    s_add_u32 s{sDS}, s{sKV}, s{sDM}
    s_add_u32 s{sDS}, s{sDS}, 2560
    s_lshl_b32 s{sT3}, s{sT3}, 9
    s_add_u32 s{sT3}, s{sT3}, {WS_NK}
    v_lshlrev_b32 v{vT + 3}, 3, v{vLANE}
    v_mov_b32 v{S[0] + 2}, 0
    v_mov_b32 v{S[0] + 3}, 0
    s_lshl_b32 s{sT2}, s{sQH}, 13
    s_lshl_b32 s{sT1}, s{sQT}, 7
    s_add_u32 s{sT2}, s{sT2}, s{sT1}
    s_add_u32 s{sT2}, s{sT2}, {WS_NQ}
    s_waitcnt lgkmcnt(0)
    """)
    srd(a, S_WS, 4, 5, WS_BYTES)
    a(f"""
    buffer_load_dwordx2 {vr(S[0], 2)}, v{vT + 3}, {sr(S_WS, 4)}, s{sT3} offen
    s_cmp_eq_u32 s{sBR}, 0
    s_cbranch_scc1 L_k2_non2
    buffer_load_dwordx2 {vr(S[0] + 2, 2)}, v{vT + 3}, {sr(S_WS, 4)}, s{sT3} offen offset:512
    L_k2_non2:
    buffer_load_dword v{vQN}, v{vT + 2}, {sr(S_WS, 4)}, s{sT2} offen
    buffer_load_dword v{vQN + 1}, v{vT + 2}, {sr(S_WS, 4)}, s{sT2} offen offset:128
    buffer_load_dwordx4 {vr(Q[0], 4)}, v{vDMA}, {sr(S_WS, 4)}, s{sQ0} offen
    buffer_load_dwordx4 {vr(F[1], 4)}, v{vDMA}, {sr(S_WS, 4)}, s{sKV} offen
    buffer_load_dwordx2 {vr(F[1] + 4, 2)}, v{vT + 1}, {sr(S_WS, 4)}, s{sKV} offen
    s_mov_b64 exec, {sr(sLO, 2)}
    buffer_load_dwordx2 {vr(Q[0] + 4, 2)}, v{vT + 1}, {sr(S_WS, 4)}, s{sQ0} offen
    buffer_load_dwordx2 {vr(Q[1] + 4, 2)}, v{vT + 1}, {sr(S_WS, 4)}, s{sQ1} offen
    s_mov_b64 exec, -1
    buffer_load_dwordx4 {vr(Q[1], 4)}, v{vDMA}, {sr(S_WS, 4)}, s{sQ1} offen
    """)
    dma_stage(a)
    a(f"""
    s_lshl_b32 s{sT0}, s{sBR}, 13
    s_add_u32 s{sT0}, s{sT0}, s{sT1}
    s_add_u32 s{sT0}, s{sT0}, {WS_G}
    buffer_load_dword v{vG}, v{vT + 2}, {sr(S_WS, 4)}, s{sT0} offen
    buffer_load_dword v{vG + 1}, v{vT + 2}, {sr(S_WS, 4)}, s{sT0} offen offset:128
    """)
    dma_stage(a)
    NAFTER = 2 * DPW + 2
    a.c("LDS read addresses, constants")
    a(f"""
    v_lshlrev_b32 v{vK0A}, 4, v{vLANE}
    v_mov_b32 v{vK1A}, v{vT + 1}
    v_lshrrev_b32 v{vT + 3}, 5, v{vLANE}
    v_mul_u32_u24 v{vT + 3}, 320, v{vT + 3}
    v_lshlrev_b32 v{vVA}, 4, v{vT}
    v_add3_u32 v{vVA}, v{vVA}, v{vT + 3}, 0
    v_add_u32 v{vVA}, 1280, v{vVA}
    s_mov_b32 s{sDELTA}, {STAGE}
    s_mov_b32 s{sST}, 0
    v_cmp_eq_u32 vcc, 20, v{vT}
    v_mov_b32 v{vT + 3}, 0x3f803f80
    s_nop 0
    v_cndmask_b32 v{vT + 3}, 0, v{vT + 3}, vcc
    """)
    for fs in range(2):
        for r in range(8):
            a(f"v_mov_b32 v{F[fs] + 8 + r}, v{vT + 3}")
    for r in range(8):
        a(f"v_mov_b32 v{P[1] + r}, 0")
    for u in range(2):
        for r in range(16):
            a(f"v_mov_b32 v{O[u] + r}, 0")
    a.c("output-projection setup: tile ids, weight SRD, weight DMA offsets")
    a(f"""
    s_lshl_b32 s{sT0}, s{sPART}, 3
    s_add_u32 s{sRB}, s{sRB}, s{sT0}
    s_lshl_b32 s{sCB}, s{sBR}, 2
    s_add_u32 s{sCB}, s{sCB}, s{sSH}
    s_mul_i32 s{sT2}, s{sCB}, 160
    s_bitcmp1_b32 s{sWV}, 1
    s_cselect_b32 s{S_W}, s40, s6
    s_cselect_b32 s{S_W + 1}, s41, s7
    s_and_b32 s{S_W + 1}, s{S_W + 1}, 0xffff
    s_mov_b32 s{S_W + 2}, {640 * 1280}
    s_mov_b32 s{S_W + 3}, 0x00020000
    s_and_b32 s{sT0}, s{sWV}, 1
    s_mul_i32 s{sT0}, s{sT0}, 320
    s_lshr_b32 s{sT1}, s{sWV}, 2
    s_mul_i32 s{sT1}, s{sT1}, 40
    s_add_u32 s{sT0}, s{sT0}, s{sT1}
    s_mul_i32 s{sWK}, s{sT0}, 1280
    s_mul_i32 s{sWM}, s{sWV}, 5120
    s_add_u32 s{sWM}, s{sWM}, {WREG}
    """)
    w_offsets(a, S[1])
    a.c("row-max stand-in m = |q| * max|k|")
    a(f"""
    s_waitcnt vmcnt({NAFTER + 8})
    v_max_f32 v{vT + 3}, v{S[0]}, v{S[0] + 1}
    v_max_f32 v{vT + 5}, v{S[0] + 2}, v{S[0] + 3}
    """)
    for k in (8, 4, 2, 1):
        a("s_nop 0")
        a(f"v_max_f32_dpp v{vT + 3}, v{vT + 3}, v{vT + 3} row_ror:{k} row_mask:0xf bank_mask:0xf")
        a(f"v_max_f32_dpp v{vT + 5}, v{vT + 5}, v{vT + 5} row_ror:{k} row_mask:0xf bank_mask:0xf")
    a(f"""
    v_mov_b32 v{vT + 4}, v{vT + 3}
    v_mov_b32 v{S[0]}, v{vT + 5}
    s_nop 1
    v_permlane16_swap_b32 v{vT + 3}, v{vT + 4}
    v_permlane16_swap_b32 v{vT + 5}, v{S[0]}
    v_max_f32 v{vT + 3}, v{vT + 3}, v{vT + 4}
    v_max_f32 v{vT + 5}, v{vT + 5}, v{S[0]}
    v_mov_b32 v{vT + 4}, v{vT + 3}
    v_mov_b32 v{S[0]}, v{vT + 5}
    s_nop 1
    v_permlane32_swap_b32 v{vT + 3}, v{vT + 4}
    v_permlane32_swap_b32 v{vT + 5}, v{S[0]}
    v_max_f32 v{vT + 3}, v{vT + 3}, v{vT + 4}
    v_max_f32 v{vT + 5}, v{vT + 5}, v{S[0]}
    v_add_f32 v{vT + 3}, v{vT + 3}, v{vT + 5}
    s_waitcnt vmcnt({NAFTER + 6})
    v_mul_f32 v{vQN}, v{vQN}, v{vT + 3}
    v_mul_f32 v{vQN + 1}, v{vQN + 1}, v{vT + 3}
    v_sqrt_f32 v{vQN}, v{vQN}
    v_sqrt_f32 v{vQN + 1}, v{vQN + 1}
    s_nop 0
    """)
    for u in range(2):
        for r in range(16):
            a(f"v_sub_f32 v{M[u] + r}, 0, v{vQN + u}")
    a(f"s_waitcnt vmcnt({NAFTER})")
    for ln in qk(0, 1):
        a(ln)
    stamp(a, 1)
    a(f"s_waitcnt vmcnt({DPW + 2})")
    a("s_barrier")
    stamp(a, 2)
    for grp in freads(0, 0):
        for ln in grp:
            a(ln)
    a("s_nop 7")
    a(".p2align 6")
    a("L_k2_stage:")
    for tt in range(TPS):
        fprev, fcur = (tt + 1) % 2, tt % 2
        slot(a, 0, 1, fprev, [])
        if tt < TPS - 1:
            a("s_waitcnt lgkmcnt(0)")
            slot(a, 1, 0, fcur, freads(fprev, (tt + 1) * 2560))
        else:
            a("s_waitcnt vmcnt(0) lgkmcnt(0)")
            a("s_barrier")
            a(f"""
            v_add_u32 v{vK0A}, s{sDELTA}, v{vK0A}
            v_add_u32 v{vK1A}, s{sDELTA}, v{vK1A}
            v_add_u32 v{vVA}, s{sDELTA}, v{vVA}
            s_sub_u32 s{sDELTA}, 0, s{sDELTA}
            s_cmp_eq_u32 s{sST}, {NST - 1}
            s_cbranch_scc1 L_k2_nodma
            s_cmp_eq_u32 s{sST}, {NST - 2}
            s_cbranch_scc1 L_k2_nokv
            """)
            dma_stage(a)
            a("L_k2_nokv:")
            dma_w(a, vW, sWM)
            a(f"""
            s_add_u32 s{sWK}, s{sWK}, {80 * 1280}
            s_add_u32 s{sWM}, s{sWM}, {STAGE}
            s_cmp_ge_u32 s{sWM}, {LDS_BYTES}
            s_cselect_b32 s{sT0}, {LDS_BYTES}, 0
            s_sub_u32 s{sWM}, s{sWM}, s{sT0}
            L_k2_nodma:
            """)
            slot(a, 1, 0, fcur, freads(fprev, 0))
    a(f"""
    s_add_u32 s{sST}, s{sST}, 1
    s_cmp_lt_u32 s{sST}, {NST}
    s_cbranch_scc1 L_k2_stage
    s_nop 1
    """)
    for ln in pv(1, (TPS - 1) % 2):
        a(ln)
    a.c("O store addresses (fills the MFMA shadow)")
    a(f"""
    s_lshr_b32 s{sT0}, s{sQH}, 4
    s_mul_i32 s{sT0}, s{sT0}, 10
    s_and_b32 s{sT1}, s{sQH}, 15
    s_lshr_b32 s{sT2}, s{sT1}, 1
    s_add_u32 s{sT2}, s{sT2}, s{sT0}
    s_lshl_b32 s{sT2}, s{sT2}, 10
    s_and_b32 s{sT3}, s{sT1}, 1
    s_lshl_b32 s{sT3}, s{sT3}, 9
    s_add_u32 s{sT2}, s{sT2}, s{sT3}
    s_lshr_b32 s{sT3}, s{sT1}, 3
    s_add_u32 s{sT0}, s{sT0}, s{sT3}
    s_add_u32 s{sT0}, s{sT0}, 8
    s_lshl_b32 s{sT0}, s{sT0}, 10
    s_bfe_u32 s{sT3}, s{sT1}, 0x20001
    s_lshl_b32 s{sT3}, s{sT3}, 8
    s_add_u32 s{sT0}, s{sT0}, s{sT3}
    s_and_b32 s{sT3}, s{sT1}, 1
    s_lshl_b32 s{sT3}, s{sT3}, 3
    s_add_u32 s{sT0}, s{sT0}, s{sT3}
    s_mul_i32 s{sT1}, s{sQT}, {2 * 40960}
    s_add_u32 s{sT1}, s{sT1}, {WS_O}
    s_add_u32 s{sO0}, s{sT2}, s{sT1}
    s_add_u32 s{sO0 + 1}, s{sO0}, {2 * 40960}
    s_add_u32 s{sO1}, s{sT0}, s{sT1}
    s_add_u32 s{sO1 + 1}, s{sO1}, {2 * 40960}
    v_lshrrev_b32 v{vT + 5}, 4, v{vT}
    v_mul_u32_u24 v{vT + 5}, 40960, v{vT + 5}
    v_and_b32 v{vT + 4}, 15, v{vLANE}
    v_lshl_add_u32 v{vT + 5}, v{vT + 4}, 4, v{vT + 5}
    v_lshrrev_b32 v{vT + 4}, 5, v{vLANE}
    v_lshl_add_u32 v{vT + 5}, v{vT + 4}, 8, v{vT + 5}
    s_waitcnt lgkmcnt(0)
    """)
    stamp(a, 3)
    a("L_k2_epi:")
    a.c("l = row 20 -> reg 8 of lanes 32..63 ; run-time check of the stand-in")
    for u in range(2):
        a(f"""
        v_mov_b32 v{vT + 3 + u}, v{O[u] + 8}
        v_mov_b32 v{S[0] + u}, v{O[u] + 8}
        """)
    a("s_nop 1")
    for u in range(2):
        a(f"v_permlane32_swap_b32 v{vT + 3 + u}, v{S[0] + u}")
    a(f"""
    v_min_f32 v{vT + 3}, v{S[0]}, v{S[0] + 1}
    s_mov_b32 s{sT0}, {f2h(THR)}
    v_cmp_nle_f32 vcc, s{sT0}, v{vT + 3}
    v_cmp_u_f32 s[34:35], v{S[0]}, v{S[0] + 1}
    s_or_b64 vcc, vcc, s[34:35]
    s_cmp_eq_u64 vcc, 0
    s_cbranch_scc1 L_k2_out
    s_cmp_eq_u32 s{sRETRY}, 0
    s_cbranch_scc1 L_k2_slow
    L_k2_out:
    """)
    for u in range(2):
        o = O[u]
        a(f"""
        v_rcp_f32 v{S[0] + u}, v{S[0] + u}
        s_nop 0
        v_mul_f32 v{S[0] + u}, v{S[0] + u}, v{vG + u}
        """)
        for r in range(12):
            a(f"v_mul_f32 v{o + r}, v{o + r}, v{S[0] + u}")
        a(f"""
        v_cvt_pk_bf16_f32 v{o}, v{o}, v{o + 1}
        v_cvt_pk_bf16_f32 v{o + 1}, v{o + 2}, v{o + 3}
        v_cvt_pk_bf16_f32 v{o + 2}, v{o + 4}, v{o + 5}
        v_cvt_pk_bf16_f32 v{o + 3}, v{o + 6}, v{o + 7}
        v_cvt_pk_bf16_f32 v{o + 4}, v{o + 8}, v{o + 9}
        v_cvt_pk_bf16_f32 v{o + 5}, v{o + 10}, v{o + 11}
        s_nop 0
        v_permlane32_swap_b32 v{o}, v{o + 2}
        v_permlane32_swap_b32 v{o + 1}, v{o + 3}
        buffer_store_dwordx4 {vr(o, 4)}, v{vT + 5}, {sr(S_WS, 4)}, s{sO0 + u} offen sc1
        s_mov_b64 exec, {sr(sLO, 2)}
        buffer_store_dwordx2 {vr(o + 4, 2)}, v{vT + 5}, {sr(S_WS, 4)}, s{sO1 + u} offen sc1
        s_mov_b64 exec, -1
        """)
    a.c("pre-read weight fragments of k-steps 0,1; set up output projection")
    a(f"""
    v_and_b32 v{vT}, 15, v{vLANE}
    v_lshrrev_b32 v{vT + 1}, 4, v{vLANE}
    v_lshrrev_b32 v{vT + 2}, 2, v{vT}
    v_lshl_add_u32 v{vT + 2}, v{vT + 1}, 2, v{vT + 2}
    v_mul_u32_u24 v{vT + 2}, 160, v{vT + 2}
    v_and_b32 v{vT + 3}, 3, v{vLANE}
    v_lshlrev_b32 v{vT + 3}, 3, v{vT + 3}
    s_and_b32 s{sT3}, s{sWV}, 3
    s_mul_i32 s{sT0}, s{sT3}, 5120
    v_add3_u32 v{vBlo}, v{vT + 2}, v{vT + 3}, s{sT0}
    v_add_u32 v{vBhi}, {WREG}, v{vBlo}
    """)
    for ln in breads(0, 0):
        a(ln)
    a("s_waitcnt lgkmcnt(4)")
    for ln in breads(1, 1):
        a(ln)
    for r in range(40):
        a(f"v_mov_b32 v{ACC + r}, 0")
    a(f"""
    s_lshr_b32 s{sT1}, s{sWV}, 2
    s_lshl_b32 s{sT0}, s{sRB}, 2
    s_lshl_b32 s{sT2}, s{sT1}, 1
    s_add_u32 s{sT0}, s{sT0}, s{sT2}
    s_mul_i32 s{sT0}, s{sT0}, 40960
    s_mul_i32 s{sT2}, s{sT3}, 10240
    s_add_u32 s{sT0}, s{sT0}, s{sT2}
    s_add_u32 s{sA}, s{sT0}, {WS_O}
    s_add_u32 s{sA + 1}, s{sA}, 40960
    s_lshl_b32 s{sCNT}, s{sPART}, 9
    s_add_u32 s{sCNT}, s{sCNT}, {WS_CNT}
    s_waitcnt vmcnt(0) lgkmcnt(0)
    s_barrier
    s_cmp_lg_u32 s{sWV}, 0
    s_cbranch_scc1 L_k2_nosig
    s_lshl_b32 s{sT0}, s{sSH}, 7
    v_mov_b32 v{vT + 2}, s{sT0}
    v_mov_b32 v{vT + 3}, 1
    s_mov_b64 exec, 1
    buffer_atomic_add v{vT + 3}, v{vT + 2}, {sr(S_WS, 4)}, s{sCNT} offen sc1
    s_mov_b64 exec, -1
    L_k2_nosig:
    """)
    stamp(a, 4)
    dma_w(a, vW, sWM)
    a(f"""
    s_and_b32 s{sT0}, s{sWV}, 1
    s_mul_i32 s{sT0}, s{sT0}, 320
    s_mul_i32 s{sT1}, s{sT1}, 160
    s_add_u32 s{sT0}, s{sT0}, s{sT1}
    s_mul_i32 s{sWK}, s{sT0}, 1280
    s_add_u32 s{sWM}, s{sWM}, {STAGE}
    """)
    dma_w(a, vW2, sWM)
    srd(a, S_OUT, 42, 43, 2048 * 1280)
    a(f"""
    s_cmp_lg_u32 s{sWV}, 0
    s_cbranch_scc1 L_k2_polled
    v_and_b32 v{vT + 2}, 3, v{vLANE}
    v_lshlrev_b32 v{vT + 2}, 7, v{vT + 2}
    s_mov_b32 s{sT0}, {SPIN}
    L_k2_poll:
    buffer_load_dword v{vT + 3}, v{vT + 2}, {sr(S_WS, 4)}, s{sCNT} offen sc1
    s_waitcnt vmcnt(0)
    v_cmp_gt_u32 vcc, 16, v{vT + 3}
    s_cmp_eq_u64 vcc, 0
    s_cbranch_scc1 L_k2_polled
    s_sub_u32 s{sT0}, s{sT0}, 1
    s_cmp_lg_u32 s{sT0}, 0
    s_cbranch_scc1 L_k2_poll
    L_k2_polled:
    s_waitcnt vmcnt(0)
    s_barrier
    """)
    stamp(a, 5)
    for ks in range(10):
        for i in range(2):
            a(f"buffer_load_dwordx4 {vr(AF + ks * 8 + 4 * i, 4)}, v{vDMA}, {sr(S_WS, 4)}, s{sA + i} offen offset:{(ks % 4) * 1024} sc1")
        if ks % 4 == 3:
            a(f"s_add_u32 s{sA}, s{sA}, 4096")
            a(f"s_add_u32 s{sA + 1}, s{sA + 1}, 4096")
    a.c("reduction / output addresses")
    a(f"""
    s_lshr_b32 s{sT1}, s{sWV}, 2
    s_mul_i32 s{sT0}, s{sT1}, {32 * PSTR}
    s_mul_i32 s{sT2}, s{sT3}, {PQ}
    s_add_u32 s{sT0}, s{sT0}, s{sT2}
    v_mul_u32_u24 v{vT + 2}, {PSTR}, v{vT}
    v_lshlrev_b32 v{vT + 3}, 4, v{vT + 1}
    v_add3_u32 v18, v{vT + 2}, v{vT + 3}, s{sT0}
    """)
    for r in range(2):
        a(f"""
        v_add_u32 v{vT + 2}, {512 * r}, v0
        v_mul_u32_u24 v{vT + 3}, 205, v{vT + 2}
        v_lshrrev_b32 v{vT + 3}, 11, v{vT + 3}
        v_mul_u32_u24 v{vT + 4}, 10, v{vT + 3}
        v_sub_u32 v{vT + 4}, v{vT + 2}, v{vT + 4}
        v_mul_u32_u24 v{vT + 2}, {PSTR}, v{vT + 3}
        v_lshl_add_u32 v{20 + r}, v{vT + 4}, 5, v{vT + 2}
        v_mul_u32_u24 v{vT + 2}, 1280, v{vT + 3}
        v_lshl_add_u32 v{22 + r}, v{vT + 4}, 4, v{vT + 2}
        """)
    a(f"""
    s_mul_i32 s{sT0}, s{sRB}, {64 * 1280}
    s_mul_i32 s{sT1}, s{sCB}, 160
    s_add_u32 s{sO0}, s{sT0}, s{sT1}
    """)
    for ks in range(10):
        st = ks % 2
        a(f"s_waitcnt vmcnt({18 - 2 * ks}) lgkmcnt(0)")
        for ln in omfmas(ks, st):
            a(ln)
        if ks + 2 < 10:
            for ln in breads(ks + 2, st):
                a(ln)
    a("""
    s_barrier
    s_nop 5
    """)
    for i in range(2):
        for jt in range(5):
            a(f"ds_write_b128 v18, {vr(ACC + (i * 5 + jt) * 4, 4)} offset:{i * 16 * PSTR + jt * 64}")
    a("""
    s_waitcnt lgkmcnt(0)
    s_barrier
    """)
    for r in range(2):
        if r == 1:
            a(f"""
            s_cmp_ge_u32 s{sWV}, 2
            s_cbranch_scc1 L_k2_fin
            """)
        for q in range(4):
            a(f"ds_read_b128 {vr(AF + 8 * q, 4)}, v{20 + r} offset:{q * PQ}")
            a(f"ds_read_b128 {vr(AF + 8 * q + 4, 4)}, v{20 + r} offset:{q * PQ + 16}")
        for q in range(1, 4):
            a(f"s_waitcnt lgkmcnt({6 - 2 * q})")
            for e in range(8):
                a(f"v_add_f32 v{AF + e}, v{AF + e}, v{AF + 8 * q + e}")
        d = AF + 32 + 4 * r
        for e in range(4):
            a(f"v_cvt_pk_bf16_f32 v{d + e}, v{AF + 2 * e}, v{AF + 2 * e + 1}")
        a(f"buffer_store_dwordx4 {vr(d, 4)}, v{22 + r}, {sr(S_OUT, 4)}, s{sO0} offen")
    a("L_k2_fin:")
    prof_store(a, 1, S_WS, sWV, 0, keep5=True)
    dbgt_end(a, 1, sWV)
    a("""
    L_k2_done:
    s_endpgm
    """)
    a.c("---- slow path (wave local): exact row max, then plain two-pass softmax from global memory ----")
    a(f"""
    L_k2_slow:
    s_mov_b32 s{sRETRY}, 1
    v_lshrrev_b32 v{vT + 3}, 5, v{vLANE}
    v_mul_u32_u24 v{vT + 3}, 320, v{vT + 3}
    v_lshl_add_u32 v{vVA}, v{vT}, 4, v{vT + 3}
    """)
    for u in range(2):
        for r in range(16):
            a(f"v_mov_b32 v{M[u] + r}, 0")
            a(f"v_mov_b32 v{O[u] + r}, 0")
        a(f"v_mov_b32 v{vQN + u}, 0xff800000")
    a(f"""
    s_mov_b32 s{sST}, 0
    s_mov_b32 s{sT3}, s{sKV}
    L_k2_maxloop:
    buffer_load_dwordx4 {vr(F[0], 4)}, v{vDMA}, {sr(S_WS, 4)}, s{sT3} offen
    buffer_load_dwordx2 {vr(F[0] + 4, 2)}, v{vT + 1}, {sr(S_WS, 4)}, s{sT3} offen
    s_waitcnt vmcnt(0)
    """)
    for ln in qk(0, 0) + qk(1, 0):
        a(ln)
    a("s_nop 7")
    a("s_nop 7")
    for u in range(2):
        for i in range(0, 16, 2):
            a(f"v_max3_f32 v{vQN + u}, v{S[u] + i}, v{S[u] + i + 1}, v{vQN + u}")
    a(f"""
    s_add_u32 s{sT3}, s{sT3}, 2560
    s_add_u32 s{sST}, s{sST}, 1
    s_cmp_lt_u32 s{sST}, 64
    s_cbranch_scc1 L_k2_maxloop
    """)
    for u in range(2):
        a(f"""
        v_mov_b32 v{vT + 3}, v{vQN + u}
        s_nop 1
        v_permlane32_swap_b32 v{vT + 3}, v{vQN + u}
        v_max_f32 v{vQN + u}, v{vQN + u}, v{vT + 3}
        """)
        for r in range(16):
            a(f"v_sub_f32 v{M[u] + r}, 0, v{vQN + u}")
    a(f"""
    s_mov_b32 s{sST}, 0
    s_mov_b32 s{sT3}, s{sKV}
    L_k2_slowloop:
    buffer_load_dwordx4 {vr(F[0], 4)}, v{vDMA}, {sr(S_WS, 4)}, s{sT3} offen
    buffer_load_dwordx2 {vr(F[0] + 4, 2)}, v{vT + 1}, {sr(S_WS, 4)}, s{sT3} offen
    s_add_u32 s{sT3}, s{sT3}, 2560
    s_mov_b64 exec, {sr(sVM, 2)}
    buffer_load_dwordx4 {vr(F[0] + 8, 4)}, v{vVA}, {sr(S_WS, 4)}, s{sT3} offen offset:1280
    buffer_load_dwordx4 {vr(F[0] + 12, 4)}, v{vVA}, {sr(S_WS, 4)}, s{sT3} offen offset:1920
    s_mov_b64 exec, -1
    s_waitcnt vmcnt(0)
    """)
    for ln in qk(0, 0) + qk(1, 0):
        a(ln)
    a("s_nop 7")
    a("s_nop 7")
    for u in range(2):
        for j in range(4):
            expcvt(a, u, j)
    a("s_nop 1")
    for ln in pv(0, 0) + pv(1, 0):
        a(ln)
    a(f"""
    s_add_u32 s{sST}, s{sST}, 1
    s_cmp_lt_u32 s{sST}, 64
    s_cbranch_scc1 L_k2_slowloop
    s_nop 7
    s_nop 7
    s_branch L_k2_epi
    """)


def desc(a):
    kernel_desc(a, NAME, NV, NS, NV)
```

```python
import sys
sys.path.insert(0, 'gen')
from common import *
import k1, k23

HDR = open('gated_mix__mha_block__grouped_kv_mqa__prompt.s.ref').read().split('; Override launch geometry')[0]

def build():
    a = Asm()
    out = HDR
    out += "; Generated by gen/gen.py (hand-written generator scripts): projections -> attention -> output projection\n"
    out += f"; @launch kernel={k1.NAME} grid=(256,1,1) block=(512,1,1) lds={k1.LDS_BYTES}\n"
    out += f"; @launch kernel={k23.NAME} grid=(256,1,1) block=(512,1,1) lds={k23.LDS_BYTES}\n"
    a('.amdgcn_target "amdgcn-amd-amdhsa--gfx950"')
    a('.text')
    for k in (k1, k23):
        k.gen(a)
    a('.section .rodata,"a"')
    for k in (k1, k23):
        k.desc(a)
    txt = a.text()
    import os, re
    fl = os.environ.get('STFLAG', '')
    if fl:
        txt = re.sub(r'^(\s*buffer_store_dword\S* .*?offen(?: offset:\d+)?)$', lambda m: m.group(1) + ' ' + fl, txt, flags=re.M)
    return out + txt

if __name__ == '__main__':
    dst = sys.argv[1] if len(sys.argv) > 1 else 'gated_mix__mha_block__grouped_kv_mqa__prompt.s'
    open(dst, 'w').write(build())
    print('wrote', dst)
```

```python
import math
import os
from common import *

NAME = "gmix_proj_kernel"
NSLOT = 4
SLOT = 39424
NCHUNK = 10
LDS_BYTES = NSLOT * SLOT
QSCALE = (20 ** -0.5) * math.log2(math.e)
ST = " " + os.environ.get("K1ST", "sc1")

S_X, S_W, S_E, S_WS, S_GW = 20, 24, 28, 32, 36
sRB, sCB, sWV, sWR, sWC, sROT, sLDW = 40, 41, 42, 43, 44, 45, 46
sKX, sKW, sKE, sMX, sMW, sME = 47, 48, 49, 50, 51, 52
sDLT = 53
sEM = 54
sT0, sT1, sT2, sT3 = 56, 57, 58, 59
sDST, sHS, sTS, sNB = 60, 61, 62, 63
sSC = 64
sSG = 66
sLDW64, sGATE = 70, 71
sQ16 = 72
sR16 = 74
sSLOT, sJ, sLW, sCNT = 76, 77, 78, 79
sA, sB_, sC = 4, 8, 12
sEA, sEB, sEC = 20, 21, 22

vLANE = 1
vX, vW, vE = 16, 20, 25
vXA, vWBm, vWBl, vWE = 26, 28, 29, 30
vG0, vG1 = 36, 37
vLm, vLl, vLn, vLk, vLm2 = 38, 39, 40, 41, 42
vVo = 43
SETS = [48, 88]
ACC = 128
ACCE = 208
GT = 212


def acc(i, jt):
    return ACC + (i * 5 + jt) * 4


def dma_chunk(a):
    a(f"s_add_u32 s{sT0}, s{sMX}, s{sSLOT}")
    a(f"s_add_u32 s{sT1}, s{sMW}, s{sSLOT}")
    a(f"s_add_u32 s{sT2}, s{sME}, s{sSLOT}")
    for i in range(4):
        a(f"s_add_u32 m0, s{sT0}, {i * 1024}")
        a("s_nop 0")
        a(f"buffer_load_dwordx4 v{vX + i}, {sr(S_X, 4)}, s{sKX} offen lds")
    for i in range(5):
        a(f"s_add_u32 m0, s{sT1}, {16384 + i * 1024}")
        a("s_nop 0")
        a(f"buffer_load_dwordx4 v{vW + i}, {sr(S_W, 4)}, s{sKW} offen lds")
    a(f"""
    s_add_u32 m0, s{sT2}, 36864
    s_mov_b64 exec, {sr(sEM, 2)}
    buffer_load_dwordx4 v{vE}, {sr(S_E, 4)}, s{sKE} offen lds
    s_mov_b64 exec, -1
    s_add_u32 s{sKX}, s{sKX}, 128
    s_add_u32 s{sKW}, s{sKW}, s{sLDW64}
    s_add_u32 s{sKE}, s{sKE}, 2560
    s_cmp_eq_u32 s{sKX}, 1280
    s_cmov_b32 s{sKX}, 0
    s_cmov_b32 s{sKW}, 0
    s_cmov_b32 s{sKE}, 0
    s_add_u32 s{sSLOT}, s{sSLOT}, {SLOT}
    s_cmp_eq_u32 s{sSLOT}, {NSLOT * SLOT}
    s_cmov_b32 s{sSLOT}, 0
    """)


def frag_reads(ks, st, vtype):
    b = SETS[st]
    r = []
    for i in range(4):
        r.append(f"ds_read_b128 {vr(b + 4 * i, 4)}, v{vXA + ks} offset:{i * 2048}")
    for jt in range(5):
        for jh in range(2):
            if vtype:
                reg, off = vWBm, 32 * jt
            elif jt < 4:
                reg, off = vWBm, 40 * jt
            else:
                reg, off = vWBl, 0
            r.append(f"ds_read_b64_tr_b16 {vr(b + 16 + 4 * jt + 2 * jh, 2)}, v{reg} offset:{ks * 5120 + jh * 2560 + off}")
    for jh in range(2):
        r.append(f"ds_read_b64_tr_b16 {vr(b + 36 + 2 * jh, 2)}, v{vWE} offset:{ks * 1280 + jh * 160}")
    return r


def mfmas(st, vtype):
    b = SETS[st]
    m = []
    for jt in range(5):
        for i in range(4):
            x, w = vr(b + 4 * i, 4), vr(b + 16 + 4 * jt, 4)
            A, B = (x, w) if vtype else (w, x)
            m.append(f"v_mfma_f32_16x16x32_bf16 {vr(acc(i, jt), 4)}, {A}, {B}, {vr(acc(i, jt), 4)}")
    x, w = vr(b, 4), vr(b + 36, 4)
    A, B = (x, w) if vtype else (w, x)
    m.append(f"v_mfma_f32_16x16x32_bf16 {vr(ACCE, 4)}, {A}, {B}, {vr(ACCE, 4)}")
    return m


def main_loop(a, vtype):
    lbl = "L_k1_loop_v" if vtype else "L_k1_loop_q"
    stamp(a, 1)
    a("s_barrier")
    stamp(a, 2)
    for ln in frag_reads(0, 0, vtype):
        a(ln)
    a(f"s_mov_b32 s{sCNT}, 0")
    a(".p2align 6")
    a(f"{lbl}:")
    a(f"""
    s_and_b32 s{sT0}, s{sCNT}, 3
    s_cmp_eq_u32 s{sT0}, 3
    s_mov_b32 s{sDLT}, {SLOT}
    s_cmov_b32 s{sDLT}, {(-3 * SLOT) & 0xffffffff}
    s_add_u32 s{sCNT}, s{sCNT}, 1
    s_waitcnt lgkmcnt(0)
    """)
    adv = [f"v_add_u32 v{r}, s{sDLT}, v{r}" for r in (vXA, vXA + 1, vWBm, vWE) + (() if vtype else (vWBl,))]
    ex = [[x] for x in frag_reads(1, 1, vtype)] + [[x] for x in adv]
    for ln in interleave(mfmas(0, vtype), ex):
        a(ln)
    a("s_waitcnt lgkmcnt(0)")
    a("s_barrier")
    for ln in interleave(mfmas(1, vtype), frag_reads(0, 0, vtype)):
        a(ln)
    a(f"s_cmp_lt_u32 s{sCNT}, {NCHUNK}")
    a(f"s_cbranch_scc1 {lbl}")
    a("s_nop 7")
    stamp(a, 3)


def rowmax(a, r):
    for k in (8, 4, 2, 1):
        a("s_nop 1")
        a(f"v_max_f32_dpp v{r}, v{r}, v{r} row_ror:{k} row_mask:0xf bank_mask:0xf")


def loader(a):
    a.c("X DMA voffsets")
    a(f"""
    v_lshrrev_b32 v2, 3, v{vLANE}
    v_and_b32 v3, 7, v{vLANE}
    v_xor_b32 v3, v3, v2
    v_lshlrev_b32 v3, 4, v3
    v_mul_u32_u24 v2, 1280, v2
    v_add_u32 v2, v2, v3
    s_lshl_b32 s{sT1}, s{sRB}, 7
    """)
    for g in range(2):
        a(f"""
        s_cmp_eq_u32 s{sWC}, 0
        s_cselect_b32 s{sT0}, s{sSG + g}, s{sSG + 2 + g}
        s_lshl_b32 s{sT0}, s{sT0}, 4
        s_add_u32 s{sT0}, s{sT0}, s{sT1}
        s_mul_i32 s{sT0}, s{sT0}, 1280
        v_add_u32 v{vX + 2 * g}, s{sT0}, v2
        v_add_u32 v{vX + 2 * g + 1}, {8 * 1280}, v{vX + 2 * g}
        """)
    a.c("W DMA voffsets")
    a(f"""
    s_mul_i32 s{sT0}, s{sWR}, 160
    s_add_u32 s{sT0}, s{sT0}, s{sT3}
    s_lshl_b32 s{sT1}, s{sWC}, 5
    s_mul_i32 s{sT1}, s{sT1}, s{sLDW}
    s_add_u32 s{sT0}, s{sT0}, s{sT1}
    """)
    for i in range(5):
        a(f"""
        v_add_u32 v2, {64 * i}, v{vLANE}
        v_mul_u32_u24 v3, 205, v2
        v_lshrrev_b32 v3, 11, v3
        v_mul_u32_u24 v4, 10, v3
        v_sub_u32 v4, v2, v4
        v_lshrrev_b32 v5, 4, v3
        v_and_b32 v6, 3, v3
        v_lshl_add_u32 v5, v5, 2, v6
        v_bfe_u32 v6, v3, 2, 2
        v_lshl_add_u32 v5, v6, 3, v5
        v_mul_lo_u32 v5, v5, s{sLDW}
        v_lshlrev_b32 v4, 4, v4
        v_add3_u32 v{vW + i}, v5, v4, s{sT0}
        """)
    a.c("k-order stagger between workgroups that share tiles (speed hint only)")
    a(f"""
    v_lshlrev_b32 v{vE}, 4, v{vLANE}
    v_add_u32 v{vE}, s{sME}, v{vE}
    s_and_b32 s{sT0}, s{sRB}, 7
    s_add_u32 s{sT0}, s{sT0}, s{sROT}
    s_mul_i32 s{sT1}, s{sT0}, 52
    s_lshr_b32 s{sT1}, s{sT1}, 8
    s_mul_i32 s{sT1}, s{sT1}, 5
    s_sub_u32 s{sT0}, s{sT0}, s{sT1}
    s_lshl_b32 s{sT0}, s{sT0}, 1
    s_lshl_b32 s{sKX}, s{sT0}, 7
    s_mul_i32 s{sKW}, s{sT0}, s{sLDW64}
    s_mul_i32 s{sKE}, s{sT0}, 2560
    s_waitcnt lgkmcnt(0)
    """)
    srd(a, S_X, 4, 5, 2048 * 1280)
    a(f"""
    s_cmp_lt_u32 s{sCB}, 12
    s_cselect_b32 s{S_W}, s6, s8
    s_cselect_b32 s{S_W + 1}, s7, s9
    s_mov_b32 s{S_W + 2}, {640 * 1280}
    s_cmov_b32 s{S_W + 2}, {640 * 3840}
    s_and_b32 s{S_W + 1}, s{S_W + 1}, 0xffff
    s_mov_b32 s{S_W + 3}, 0x00020000
    s_lshr_b32 s{sT0}, s{sCB}, 2
    s_cmp_eq_u32 s{sT0}, 2
    s_cselect_b32 s{S_E}, s12, s10
    s_cselect_b32 s{S_E + 1}, s13, s11
    s_and_b32 s{S_E + 1}, s{S_E + 1}, 0xffff
    s_mov_b32 s{S_E + 2}, 25600
    s_mov_b32 s{S_E + 3}, 0x00020000
    """)
    if PROF:
        a("s_mov_b32 s97, 1")
        a("v_mov_b32 v52, 0")
        a("v_writelane_b32 v52, s80, 0")

    def sync(n):
        tl(a, 52, 97)
        a(f"s_waitcnt vmcnt({n})")
        tl(a, 52, 97)
        a("s_barrier")
        tl(a, 52, 97)
    a.c("loader loop")
    a(f"""
    L_k1_ld:
    s_cmp_lt_u32 s{sJ}, 2
    s_cbranch_scc1 L_k1_ld2
    """)
    sync(10)
    a("L_k1_ld2:")
    dma_chunk(a)
    a(f"""
    s_add_u32 s{sJ}, s{sJ}, 1
    s_cmp_lt_u32 s{sJ}, {NCHUNK}
    s_cbranch_scc1 L_k1_ld
    """)
    sync(10)
    sync(0)
    srd(a, S_WS, 16, 17, WS_BYTES)
    srd(a, S_GW, 14, 15, 1280)
    tl_store(a, 52, S_WS, sWV, 53)
    a(f"""
    s_cmp_lg_u32 s{sGATE}, 0
    s_cbranch_scc1 L_k1_gate
    s_barrier
    s_branch L_k1_done
    L_k1_gate:
    s_lshr_b32 s{sT0}, s{sCB}, 3
    s_lshl_b32 s{sT0}, s{sT0}, 2
    s_add_u32 s{sT0}, s{sT0}, s{sROT}
    s_lshl_b32 s{sT0}, s{sT0}, 4
    s_lshl_b32 s{sT1}, s{sRB}, 7
    s_add_u32 s{sT0}, s{sT0}, s{sT1}
    s_lshl_b32 s{sT1}, s{sLW}, 2
    s_add_u32 s{sT0}, s{sT0}, s{sT1}
    v_lshrrev_b32 v2, 4, v{vLANE}
    v_add_u32 v{vG1}, s{sT0}, v2
    v_and_b32 v3, 15, v{vLANE}
    v_lshlrev_b32 v3, 4, v3
    v_mul_u32_u24 v2, 1280, v{vG1}
    v_add_u32 v2, v2, v3
    """)
    for i in range(5):
        a(f"buffer_load_dwordx4 {vr(GT + 4 * i, 4)}, v2, {sr(S_X, 4)}, 0 offen offset:{256 * i}")
        a(f"buffer_load_dwordx4 {vr(GT + 20 + 4 * i, 4)}, v3, {sr(S_GW, 4)}, 0 offen offset:{256 * i}")
    a("""
    s_barrier
    v_mov_b32 v2, 0
    v_mov_b32 v3, 0
    s_waitcnt vmcnt(0)
    """)
    for i in range(20):
        x, g = GT + i, GT + 20 + i
        a(f"""
        v_lshlrev_b32 v4, 16, v{x}
        v_lshlrev_b32 v5, 16, v{g}
        v_and_b32 v6, 0xffff0000, v{x}
        v_and_b32 v7, 0xffff0000, v{g}
        v_mul_f32 v4, v4, v5
        v_mul_f32 v6, v6, v7
        v_cvt_pk_bf16_f32 v4, v4, v6
        v_lshlrev_b32 v5, 16, v4
        v_and_b32 v6, 0xffff0000, v4
        v_add_f32 v2, v2, v5
        v_add_f32 v3, v3, v6
        """)
    a("v_add_f32 v2, v2, v3")
    for k in (8, 4, 2, 1):
        a("s_nop 1")
        a(f"v_add_f32_dpp v2, v2, v2 row_ror:{k} row_mask:0xf bank_mask:0xf")
    a(f"""
    v_cvt_pk_bf16_f32 v2, v2, v2
    v_lshlrev_b32 v2, 16, v2
    v_mul_f32 v2, {f2h(-math.log2(math.e))}, v2
    v_exp_f32 v2, v2
    s_nop 0
    v_add_f32 v2, 1.0, v2
    v_rcp_f32 v2, v2
    s_nop 0
    v_cvt_pk_bf16_f32 v2, v2, v2
    v_lshlrev_b32 v{vG0}, 16, v2
    v_sub_f32 v2, 1.0, v{vG0}
    v_cvt_pk_bf16_f32 v2, v2, v2
    v_lshlrev_b32 v2, 16, v2
    v_lshlrev_b32 v3, 2, v{vG1}
    s_mov_b32 s{sT0}, {WS_G}
    s_mov_b32 s{sT1}, {WS_G + 8192}
    s_mov_b64 exec, {sr(sR16, 2)}
    buffer_store_dword v{vG0}, v3, {sr(S_WS, 4)}, s{sT0} offen{ST}
    buffer_store_dword v2, v3, {sr(S_WS, 4)}, s{sT1} offen{ST}
    s_branch L_k1_done
    """)


def qk_path(a):
    a.c("QK epilogue setup")
    a(f"""
    s_cmp_eq_u32 s{sT0}, 1
    s_mov_b32 s{sHS}, {Q_HEAD_STRIDE}
    s_cmov_b32 s{sHS}, {KV_HEAD_STRIDE}
    s_mov_b32 s{sTS}, 1280
    s_cmov_b32 s{sTS}, 2560
    s_cselect_b32 s{sSC}, 1.0, {f2h(QSCALE)}
    s_cselect_b32 s{sSC + 1}, 1.0, {f2h(QSCALE)}
    s_cselect_b32 s{sDST}, {WS_KV}, {WS_Q}
    s_mov_b32 s{sNB}, {WS_NQ}
    s_cmov_b32 s{sNB}, {WS_NK}
    s_cselect_b32 s{sT3}, 9, 13
    s_lshl_b32 s{sT1}, s{sROT}, 3
    s_cmp_eq_u32 s{sT0}, 3
    s_cselect_b32 s{sT2}, 32, 0
    s_add_u32 s{sT1}, s{sT1}, s{sT2}
    s_lshl_b32 s{sT2}, s{sWC}, 2
    s_add_u32 s{sT1}, s{sT1}, s{sT2}
    s_mul_i32 s{sT2}, s{sT1}, s{sHS}
    s_add_u32 s{sDST}, s{sDST}, s{sT2}
    s_lshl_b32 s{sT2}, s{sT1}, s{sT3}
    s_add_u32 s{sNB}, s{sNB}, s{sT2}
    v_lshrrev_b32 v4, 1, v3
    v_lshlrev_b32 v4, 9, v4
    v_and_b32 v5, 1, v3
    v_lshlrev_b32 v6, 4, v2
    v_add_u32 v4, v4, v6
    v_lshl_add_u32 v{vLm}, v5, 3, v4
    v_mul_lo_u32 v5, v5, s{sHS}
    v_add_u32 v{vLm2}, v4, v5
    v_mul_lo_u32 v4, v3, s{sHS}
    v_lshl_add_u32 v{vLl}, v2, 3, v4
    v_lshlrev_b32 v{vLk}, 9, v3
    s_lshl_b32 s{sHS}, s{sHS}, 1
    v_add_u32 v{vLn}, s{sHS}, v{vLm2}
    """)
    KB = WS_KV + 32 * KV_HEAD_STRIDE
    for i in range(4):
        a(f"""
        s_lshr_b32 s{sT0}, s{sSG + i}, 1
        s_lshl_b32 s{sT1}, s{sRB}, 2
        s_add_u32 s{sT3}, s{sT0}, s{sT1}
        s_mul_i32 s{sT0}, s{sT3}, s{sTS}
        s_add_u32 s{sT0}, s{sT0}, s{sDST}
        s_and_b32 s{sT1}, s{sSG + i}, 1
        s_lshl_b32 s{sT2}, s{sT1}, 8
        s_add_u32 s{sA + i}, s{sT0}, s{sT2}
        s_lshl_b32 s{sT1}, s{sT1}, 7
        s_add_u32 s{sB_ + i}, s{sT0}, s{sT1}
        s_add_u32 s{sB_ + i}, s{sB_ + i}, 1024
        """)
        if i == 0:
            a(f"""
            s_mul_i32 s{sT0}, s{sT3}, 2560
            s_add_u32 s{sT0}, s{sT0}, {KB}
            s_add_u32 s{sEA}, s{sT0}, s{sT2}
            s_add_u32 s{sEB}, s{sT0}, s{sT1}
            s_add_u32 s{sEB}, s{sEB}, 1024
            """)
        a(f"""
        s_lshl_b32 s{sT2}, s{sRB}, 3
        s_add_u32 s{sT2}, s{sT2}, s{sSG + i}
        s_lshl_b32 s{sT2}, s{sT2}, 2
        s_lshl_b32 s{sT3}, s{sT2}, 4
        s_cmp_eq_u32 s{sTS}, 2560
        s_cselect_b32 s{sT3}, s{sT2}, s{sT3}
        s_add_u32 s{sC + i}, s{sT3}, s{sNB}
        """)
        if i == 0:
            a(f"""
            s_lshl_b32 s{sT3}, s{sWC}, 9
            s_add_u32 s{sEC}, s{sT2}, s{sT3}
            s_add_u32 s{sEC}, s{sEC}, {WS_NK + 32 * 512}
            """)
    main_loop(a, False)
    a.c("QK epilogue")
    a(f"s_cmp_eq_u32 s{sTS}, 2560")
    for i in range(4):
        for jt in range(5):
            b = acc(i, jt)
            a(f"v_pk_mul_f32 {vr(b, 2)}, {vr(b, 2)}, {sr(sSC, 2)}")
            a(f"v_pk_mul_f32 {vr(b + 2, 2)}, {vr(b + 2, 2)}, {sr(sSC, 2)}")
        for jt in range(5):
            b = acc(i, jt)
            d = acc(i, jt & ~1) + 2 * (jt & 1)
            a(f"v_cvt_pk_bf16_f32 v{d}, v{b}, v{b + 1}")
            a(f"v_cvt_pk_bf16_f32 v{d + 1}, v{b + 2}, v{b + 3}")
        a(f"s_cbranch_scc0 L_k1_nn{i}")
        for jt in range(5):
            d = acc(i, jt & ~1) + 2 * (jt & 1)
            a(f"v_dot2_f32_bf16 v{2 + jt}, v{d}, v{d}, 0")
        for jt in range(5):
            d = acc(i, jt & ~1) + 2 * (jt & 1)
            a(f"v_dot2_f32_bf16 v{2 + jt}, v{d + 1}, v{d + 1}, v{2 + jt}")
        a(f"""
        s_nop 2
        v_permlane16_swap_b32 v2, v3
        v_permlane16_swap_b32 v4, v5
        v_add_f32 v2, v2, v3
        v_add_f32 v4, v4, v5
        s_nop 1
        v_permlane32_swap_b32 v2, v4
        v_add_f32 v2, v2, v4
        v_add_f32 v{8 + i}, v2, v6
        L_k1_nn{i}:
        """)
        b4 = acc(i, 4)
        a(f"buffer_store_dwordx2 {vr(b4, 2)}, v{vLl}, {sr(S_WS, 4)}, s{sB_ + i} offen{ST}")
        for p in range(2):
            d = acc(i, 2 * p)
            a(f"v_permlane16_swap_b32 v{d}, v{d + 2}")
            a(f"v_permlane16_swap_b32 v{d + 1}, v{d + 3}")
            a(f"buffer_store_dwordx4 {vr(d, 4)}, v{vLm2}, {sr(S_WS, 4)}, s{sA + i + 0} offen{ST}" if p == 0 else
              f"buffer_store_dwordx4 {vr(d, 4)}, v{vLn}, {sr(S_WS, 4)}, s{sA + i} offen{ST}")
    a("s_cbranch_scc1 L_k1_kn")
    b = ACCE
    a.c("K_B extra tile (cb<4)")
    a(f"""
    s_cmp_ge_u32 s{sCB}, 4
    s_cbranch_scc1 L_k1_done
    v_cvt_pk_bf16_f32 v{b}, v{b}, v{b + 1}
    v_cvt_pk_bf16_f32 v{b + 1}, v{b + 2}, v{b + 3}
    v_dot2_f32_bf16 v2, v{b}, v{b}, 0
    v_dot2_f32_bf16 v2, v{b + 1}, v{b + 1}, v2
    s_cmp_eq_u32 s{sWC}, 1
    s_cbranch_scc1 L_k1_kb1
    buffer_store_dwordx2 {vr(b, 2)}, v{vLm}, {sr(S_WS, 4)}, s{sEA} offen{ST}
    s_nop 0
    v_mov_b32 v3, v2
    s_nop 1
    v_permlane16_swap_b32 v2, v3
    v_add_f32 v2, v2, v3
    v_mov_b32 v3, v2
    s_nop 1
    v_permlane32_swap_b32 v2, v3
    v_add_f32 v2, v2, v3
    s_branch L_k1_kb2
    L_k1_kb1:
    s_mov_b64 exec, {sr(sQ16, 2)}
    buffer_store_dwordx2 {vr(b, 2)}, v{vLl}, {sr(S_WS, 4)}, s{sEB} offen{ST}
    s_mov_b64 exec, -1
    L_k1_kb2:
    """)
    rowmax(a, 2)
    a(f"""
    s_mov_b64 exec, 1
    buffer_store_dword v2, v{vLk}, {sr(S_WS, 4)}, s{sEC} offen{ST}
    s_branch L_k1_done
    L_k1_kn:
    """)
    for k in (8, 4, 2, 1):
        for i in range(4):
            a(f"v_max_f32_dpp v{8 + i}, v{8 + i}, v{8 + i} row_ror:{k} row_mask:0xf bank_mask:0xf")
    a(f"s_mov_b64 exec, {sr(sR16, 2)}")
    for i in range(4):
        a(f"buffer_store_dword v{8 + i}, v{vLk}, {sr(S_WS, 4)}, s{sC + i} offen{ST}")
    a("s_branch L_k1_done")


def v_path(a):
    a.c("V epilogue setup")
    a(f"""
    v_and_b32 v4, 1, v3
    v_mul_u32_u24 v4, 320, v4
    v_lshrrev_b32 v5, 1, v3
    s_mov_b32 s{sHS}, {KV_HEAD_STRIDE}
    v_lshlrev_b32 v8, 4, v5
    v_lshl_add_u32 v9, v5, 3, v4
    """)
    for p in range(3):
        a(f"v_add_u32 v5, {32 * p}, v2")
        if p < 2:
            a("v_add_u32 v5, v5, v8")
        a(f"""
        v_mul_u32_u24 v6, 205, v5
        v_lshrrev_b32 v6, 12, v6
        v_mul_u32_u24 v7, 20, v6
        v_sub_u32 v7, v5, v7
        v_mul_lo_u32 v6, v6, s{sHS}
        v_lshlrev_b32 v7, 4, v7
        v_add3_u32 v{vVo + p}, v6, v7, v{4 if p < 2 else 9}
        """)
    a(f"""
    s_lshl_b32 s{sT0}, s{sWC}, 4
    v_add_u32 v5, s{sT0}, v2
    v_cmp_gt_u32 {sr(sSC, 2)}, 20, v5
    v_lshl_add_u32 v{vVo + 3}, v5, 4, v9
    s_lshl_b32 s{sT1}, s{sROT}, 3
    s_lshl_b32 s{sT2}, s{sWC}, 2
    s_add_u32 s{sT1}, s{sT1}, s{sT2}
    s_mul_i32 s{sDST}, s{sT1}, s{sHS}
    s_add_u32 s{sDST}, s{sDST}, {WS_KV + 2560 + 1280}
    """)
    for i in range(4):
        a(f"""
        s_lshr_b32 s{sT0}, s{sSG + i}, 1
        s_lshl_b32 s{sT1}, s{sRB}, 2
        s_add_u32 s{sT0}, s{sT0}, s{sT1}
        s_mul_i32 s{sT0}, s{sT0}, 2560
        s_and_b32 s{sT1}, s{sSG + i}, 1
        s_mul_i32 s{sT1}, s{sT1}, 640
        s_add_u32 s{sT0}, s{sT0}, s{sT1}
        s_add_u32 s{sA + i}, s{sT0}, s{sDST}
        """)
        if i == 0:
            a(f"s_add_u32 s{sEB}, s{sT0}, {WS_KV + 32 * KV_HEAD_STRIDE + 2560 + 1280}")
    main_loop(a, True)
    a.c("V epilogue")
    for i in range(4):
        for jt in range(5):
            b = acc(i, jt)
            d = acc(i, jt & ~1) + 2 * (jt & 1)
            a(f"v_cvt_pk_bf16_f32 v{d}, v{b}, v{b + 1}")
            a(f"v_cvt_pk_bf16_f32 v{d + 1}, v{b + 2}, v{b + 3}")
        a(f"buffer_store_dwordx2 {vr(acc(i, 4), 2)}, v{vVo + 2}, {sr(S_WS, 4)}, s{sA + i} offen{ST}")
        for p in range(2):
            d = acc(i, 2 * p)
            a(f"v_permlane32_swap_b32 v{d}, v{d + 2}")
            a(f"v_permlane32_swap_b32 v{d + 1}, v{d + 3}")
            a(f"buffer_store_dwordx4 {vr(d, 4)}, v{vVo + p}, {sr(S_WS, 4)}, s{sA + i} offen{ST}")
    b = ACCE
    a(f"""
    v_cvt_pk_bf16_f32 v{b}, v{b}, v{b + 1}
    v_cvt_pk_bf16_f32 v{b + 1}, v{b + 2}, v{b + 3}
    s_mov_b64 exec, {sr(sSC, 2)}
    buffer_store_dwordx2 {vr(b, 2)}, v{vVo + 3}, {sr(S_WS, 4)}, s{sEB} offen{ST}
    """)


def gen(a):
    kernel_header(a, NAME)
    a("""
    s_cmp_ge_u32 s2, 256
    s_cbranch_scc1 L_k1_exit
    """)
    stamp(a, 0)
    dbgt_start(a)
    a(f"""
    s_load_dwordx4 s[4:7], s[0:1], {KA_X}
    s_load_dwordx4 s[8:11], s[0:1], {KA_WQB}
    s_load_dwordx2 s[12:13], s[0:1], {KA_WVB}
    s_load_dwordx2 s[14:15], s[0:1], {KA_GATE}
    s_load_dwordx2 s[16:17], s[0:1], {KA_WS}
    v_lshrrev_b32 v2, 6, v0
    v_and_b32 v{vLANE}, 63, v0
    s_and_b32 s{sT0}, s2, 7
    s_lshr_b32 s{sT1}, s2, 3
    v_readfirstlane_b32 s{sWV}, v2
    s_and_b32 s{sRB}, s{sT0}, 1
    s_lshl_b32 s{sRB}, s{sRB}, 3
    s_and_b32 s{sT2}, s{sT1}, 7
    s_add_u32 s{sRB}, s{sRB}, s{sT2}
    s_lshr_b32 s{sCB}, s{sT0}, 1
    s_lshl_b32 s{sCB}, s{sCB}, 2
    s_lshr_b32 s{sROT}, s{sT1}, 3
    s_add_u32 s{sCB}, s{sCB}, s{sROT}
    s_and_b32 s{sLW}, s{sWV}, 3
    s_lshr_b32 s{sWR}, s{sLW}, 1
    s_and_b32 s{sWC}, s{sLW}, 1
    s_mov_b32 s{sR16}, 0x00010001
    s_mov_b32 s{sR16 + 1}, 0x00010001
    s_lshl_b32 s{sT1}, s{sWR}, 2
    """)
    for i in range(4):
        a(f"""
        s_add_u32 s{sT0}, s{sROT}, {i}
        s_and_b32 s{sT0}, s{sT0}, 3
        s_add_u32 s{sSG + i}, s{sT0}, s{sT1}
        """)
    a(f"""
    s_cmp_lt_u32 s{sWV}, 4
    s_cbranch_scc1 L_k1_compute
    s_mov_b32 s{sEM}, -1
    s_mov_b32 s{sEM + 1}, 0xff
    s_lshl_b32 s{sMX}, s{sLW}, 12
    s_mul_i32 s{sMW}, s{sLW}, 5120
    s_mul_i32 s{sME}, s{sLW}, 640
    s_mov_b32 s{sSLOT}, 0
    s_mov_b32 s{sJ}, 0
    s_cmp_lt_u32 s{sCB}, 12
    s_mov_b32 s{sLDW}, 1280
    s_cmov_b32 s{sLDW}, 3840
    s_cselect_b32 s{sT0}, 0, 12
    s_sub_u32 s{sT0}, s{sCB}, s{sT0}
    s_mul_i32 s{sT3}, s{sT0}, 320
    s_lshl_b32 s{sLDW64}, s{sLDW}, 6
    s_bfe_u32 s{sGATE}, s{sCB}, 0x10002
    """)
    loader(a)
    a("L_k1_compute:")
    a.c("warm L2 with the code of both kernels (speed hint only)")
    a(f"""
    s_getpc_b64 s[20:21]
    L_k1_pc:
    s_sub_u32 s20, s20, L_k1_pc-{NAME}
    s_subb_u32 s21, s21, 0
    s_and_b32 s21, s21, 0xffff
    s_mov_b32 s22, L_code_end-{NAME}
    s_mov_b32 s23, 0x00020000
    v_lshlrev_b32 v4, 7, v0
    buffer_load_dword v{GT}, v4, s[20:23], 0 offen
    """)
    a.c("fragment read addresses")
    a(f"""
    s_mov_b32 s{sQ16}, 0xffff
    s_mov_b32 s{sQ16 + 1}, 0
    v_and_b32 v2, 15, v{vLANE}
    v_lshrrev_b32 v3, 4, v{vLANE}
    v_and_b32 v4, 7, v{vLANE}
    v_xor_b32 v4, v4, v3
    v_lshlrev_b32 v4, 4, v4
    v_lshlrev_b32 v5, 7, v2
    s_lshl_b32 s{sT0}, s{sWR}, 13
    v_add3_u32 v{vXA}, v5, v4, s{sT0}
    v_xor_b32 v{vXA + 1}, 64, v{vXA}
    v_lshrrev_b32 v4, 2, v2
    v_and_b32 v5, 3, v{vLANE}
    v_lshl_add_u32 v6, v3, 2, v4
    v_mul_u32_u24 v6, 160, v6
    s_mul_i32 s{sT0}, s{sWC}, 10240
    s_add_u32 s{sT0}, s{sT0}, 16384
    v_add_u32 v6, s{sT0}, v6
    v_lshlrev_b32 v7, 3, v5
    v_add_u32 v{vWBm}, v6, v7
    v_mul_u32_u24 v8, 40, v5
    v_add3_u32 v{vWBl}, v6, v8, 32
    v_lshl_add_u32 v6, v3, 3, v4
    v_mul_u32_u24 v6, 40, v6
    v_mov_b32 v8, 32
    s_cmp_eq_u32 s{sWC}, 0
    s_cselect_b64 vcc, -1, 0
    v_add_u32 v6, 36864, v6
    v_cndmask_b32 v7, v8, v7, vcc
    v_add_u32 v{vWE}, v6, v7
    """)
    for r in range(ACC, ACCE + 4):
        a(f"v_mov_b32 v{r}, 0")
    a("s_waitcnt lgkmcnt(0)")
    srd(a, S_WS, 16, 17, WS_BYTES)
    a.c("zero the hand-off counters of the next launch")
    a(f"""
    s_or_b32 s{sT0}, s2, s{sWV}
    s_cmp_lg_u32 s{sT0}, 0
    s_cbranch_scc1 L_k1_nz
    v_lshlrev_b32 v4, 7, v2
    s_mov_b32 s{sT0}, {WS_CNT}
    buffer_store_dword v{ACC}, v4, {sr(S_WS, 4)}, s{sT0} offen sc1
    L_k1_nz:
    s_lshr_b32 s{sT0}, s{sCB}, 2
    s_cmp_eq_u32 s{sT0}, 2
    s_cbranch_scc1 L_k1_vtype
    """)
    qk_path(a)
    a("L_k1_vtype:")
    v_path(a)
    a("L_k1_done:")
    prof_store(a, 0, S_WS, sWV, 4)
    dbgt_end(a, 0, sWV)
    a("""
    L_k1_exit:
    s_endpgm
    """)


def desc(a):
    kernel_desc(a, NAME, 256, 96, 256)
```

```python
import math
import os
from common import *

NAME = "gmix_attn_kernel"
TPS = 16
NST = 64 // TPS
STAGE = TPS * 2560
WREG = 2 * STAGE
LDS_BYTES = 163840
DPW = STAGE // 1024 // 8
THR = float(os.environ.get('K2THR', 2.0 ** -40))
PSTR = 336
PQ = 64 * PSTR
SPIN = 400000

S_WS, S_W, S_OUT = 8, 44, 48
sWV, sBR, sKV, sQH, sQT = 12, 13, 14, 15, 16
sT0, sT1, sT2, sT3 = 17, 18, 19, 20
sPART = 21
sVM = 22
sLO = 24
sST, sDM, sDS, sDELTA, sRETRY = 26, 27, 28, 29, 30
sQ0, sQ1 = 31, 32
sKO = 33
sO0, sO1 = 36, 38
sWK, sWM, sRB, sCB = 52, 53, 54, 55
sA = 56
sCNT, sSH = 58, 59
NS = 64

vLANE = 1
vK0A, vK1A, vVA, vDMA = 2, 3, 4, 5
vQN = 6
vG = 8
vT = 10
Q = [16, 24]
F = [32, 48]
P = [64, 72]
M = [80, 96]
O = [112, 128]
S = [144, 160]
vW = 192
vW2 = 197
NV = 208
BS = [32, 52]
ACC = 72
AF = 112
vBlo, vBhi = 16, 17


def qk(u, fs):
    f = F[fs]
    return [f"v_mfma_f32_32x32x16_bf16 {vr(S[u], 16)}, {vr(f, 4)}, {vr(Q[u], 4)}, {vr(M[u], 16)}",
            f"v_mfma_f32_32x32x8_bf16 {vr(S[u], 16)}, {vr(f + 4, 2)}, {vr(Q[u] + 4, 2)}, {vr(S[u], 16)}"]


def pv(u, fs):
    f = F[fs]
    return [f"v_mfma_f32_32x32x16_bf16 {vr(O[u], 16)}, {vr(f + 8, 4)}, {vr(P[u], 4)}, {vr(O[u], 16)}",
            f"v_mfma_f32_32x32x16_bf16 {vr(O[u], 16)}, {vr(f + 12, 4)}, {vr(P[u] + 4, 4)}, {vr(O[u], 16)}"]


RV = int(os.environ.get('K2RV', '1'))


def freads(fs, off):
    f = F[fs]
    if RV == 1:
        return [[f"ds_read_b128 {vr(f, 4)}, v{vK0A} offset:{off}",
                 f"ds_read_b64 {vr(f + 4, 2)}, v{vK1A} offset:{off}"],
                [f"s_mov_b64 exec, {sr(sVM, 2)}",
                 f"ds_read_b128 {vr(f + 8, 4)}, v{vVA} offset:{off}",
                 f"ds_read_b128 {vr(f + 12, 4)}, v{vVA} offset:{off + 640}",
                 "s_mov_b64 exec, -1"]]
    return [[f"ds_read_b128 {vr(f, 4)}, v{vK0A} offset:{off}",
             f"ds_read_b64 {vr(f + 4, 2)}, v{vK1A} offset:{off}",
             f"s_mov_b64 exec, {sr(sVM, 2)}",
             f"ds_read_b128 {vr(f + 8, 4)}, v{vVA} offset:{off}",
             f"ds_read_b128 {vr(f + 12, 4)}, v{vVA} offset:{off + 640}",
             "s_mov_b64 exec, -1"]]


def expcvt(a, u, j):
    for r in range(4):
        a(f"v_exp_f32 v{S[u] + 4 * j + r}, v{S[u] + 4 * j + r}")
    for r in range(2):
        a(f"v_cvt_pk_bf16_f32 v{P[u] + 2 * j + r}, v{S[u] + 4 * j + 2 * r}, v{S[u] + 4 * j + 2 * r + 1}")


def slot(a, ue, um, fs, extras):
    mm = qk(um, fs) + pv(um, fs)
    for j in range(4):
        a(mm[j])
        if j < len(extras):
            for ln in extras[j]:
                a(ln)
        expcvt(a, ue, j)


def dma_stage(a):
    for i in range(DPW):
        a(f"s_add_u32 m0, s{sDM}, {i * 1024}")
        if i:
            a(f"s_add_u32 s{sT0}, s{sDS}, {i * 1024}")
        else:
            a(f"s_mov_b32 s{sT0}, s{sDS}")
        a(f"buffer_load_dwordx4 v{vDMA}, {sr(S_WS, 4)}, s{sT0} offen lds")
    a(f"s_add_u32 s{sDS}, s{sDS}, {STAGE}")
    a(f"s_xor_b32 s{sDM}, s{sDM}, s{sKO}")


def dma_w(a, vbase, sm0):
    for i in range(5):
        a(f"s_add_u32 m0, s{sm0}, {i * 1024}")
        a("s_nop 0")
        a(f"buffer_load_dwordx4 v{vbase + i}, {sr(S_W, 4)}, s{sWK} offen lds")


def w_offsets(a, t):
    for i in range(5):
        a(f"""
        v_add_u32 v{t}, {64 * i}, v{vLANE}
        v_mul_u32_u24 v{t + 1}, 205, v{t}
        v_lshrrev_b32 v{t + 1}, 11, v{t + 1}
        v_mul_u32_u24 v{t + 2}, 10, v{t + 1}
        v_sub_u32 v{t + 2}, v{t}, v{t + 2}
        v_lshlrev_b32 v{t + 2}, 4, v{t + 2}
        v_lshrrev_b32 v{t + 3}, 4, v{t + 1}
        v_and_b32 v{t + 4}, 3, v{t + 1}
        v_bfe_u32 v{t + 5}, v{t + 1}, 2, 1
        v_bfe_u32 v{t + 6}, v{t + 1}, 3, 1
        v_bfe_u32 v{t + 7}, v{t + 1}, 2, 2
        v_lshl_add_u32 v{t + 7}, v{t + 7}, 1, v{t + 3}
        v_mul_u32_u24 v{t + 7}, 20, v{t + 7}
        v_add3_u32 v{t + 7}, v{t + 7}, v{t + 4}, 16
        v_mul_u32_u24 v{t + 7}, 1280, v{t + 7}
        v_add3_u32 v{vW2 + i}, v{t + 7}, v{t + 2}, s{sT2}
        v_mul_u32_u24 v{t}, 20, v{t + 6}
        v_lshl_add_u32 v{t}, v{t + 5}, 3, v{t}
        v_lshl_add_u32 v{t}, v{t + 3}, 2, v{t}
        v_add_u32 v{t}, v{t}, v{t + 4}
        v_mul_u32_u24 v{t}, 1280, v{t}
        v_add3_u32 v{vW + i}, v{t}, v{t + 2}, s{sT2}
        """)


def breads(ks, st):
    if ks < 4:
        reg, base = vBhi, ks * 20480
    elif ks < 8:
        reg, base = vBlo, (ks - 4) * 20480
    else:
        reg, base = vBhi, (ks - 8) * 20480
    r = []
    for jt in range(5):
        for jh in range(2):
            r.append(f"ds_read_b64_tr_b16 {vr(BS[st] + 4 * jt + 2 * jh, 2)}, v{reg} offset:{base + jh * 2560 + 32 * jt}")
    return r


def omfmas(ks, st):
    m = []
    for jt in range(5):
        for i in range(2):
            c = ACC + (i * 5 + jt) * 4
            m.append(f"v_mfma_f32_16x16x32_bf16 {vr(c, 4)}, {vr(BS[st] + 4 * jt, 4)}, {vr(AF + ks * 8 + 4 * i, 4)}, {vr(c, 4)}")
    return m


def gen(a):
    kernel_header(a, NAME)
    a("""
    s_cmp_ge_u32 s2, 256
    s_cbranch_scc1 L_k2_done
    """)
    stamp(a, 0)
    dbgt_start(a)
    a(f"""
    s_load_dwordx2 s[4:5], s[0:1], {KA_WS}
    s_load_dwordx2 s[6:7], s[0:1], {KA_WOA}
    s_load_dwordx2 s[40:41], s[0:1], {KA_WOB}
    s_load_dwordx2 s[42:43], s[0:1], {KA_OUT}
    v_lshrrev_b32 v{vT}, 6, v0
    v_and_b32 v{vLANE}, 63, v0
    s_and_b32 s{sRB}, s2, 7
    s_bfe_u32 s{sT1}, s2, 0x40003
    v_readfirstlane_b32 s{sWV}, v{vT}
    s_lshr_b32 s{sBR}, s2, 7
    s_lshl_b32 s{sT0}, s{sRB}, 2
    s_lshr_b32 s{sSH}, s{sT1}, 2
    s_add_u32 s{sT0}, s{sT0}, s{sSH}
    s_and_b32 s{sPART}, s{sT1}, 3
    s_lshl_b32 s{sT2}, s{sBR}, 5
    s_add_u32 s{sQH}, s{sT0}, s{sT2}
    s_cmp_eq_u32 s{sBR}, 0
    s_cselect_b32 s{sT3}, s{sT0}, 32
    s_mul_i32 s{sKV}, s{sT3}, {KV_HEAD_STRIDE}
    s_add_u32 s{sKV}, s{sKV}, {WS_KV}
    s_lshl_b32 s{sQT}, s{sPART}, 4
    s_lshl_b32 s{sT0}, s{sWV}, 1
    s_add_u32 s{sQT}, s{sQT}, s{sT0}
    s_mov_b32 s{sVM}, 0xfffff
    s_mov_b32 s{sVM + 1}, 0xfffff
    s_mov_b32 s{sLO}, -1
    s_mov_b32 s{sLO + 1}, 0
    s_mov_b32 s{sRETRY}, 0
    s_mul_i32 s{sQ0}, s{sQH}, {Q_HEAD_STRIDE}
    s_mul_i32 s{sT0}, s{sQT}, 1280
    s_add_u32 s{sQ0}, s{sQ0}, s{sT0}
    s_add_u32 s{sQ0}, s{sQ0}, {WS_Q}
    s_add_u32 s{sQ1}, s{sQ0}, 1280
    v_lshlrev_b32 v{vDMA}, 4, v{vLANE}
    v_and_b32 v{vT}, 31, v{vLANE}
    v_lshlrev_b32 v{vT + 1}, 3, v{vT}
    v_add_u32 v{vT + 1}, 1024, v{vT + 1}
    v_lshlrev_b32 v{vT + 2}, 2, v{vT}
    v_mov_b32 v{Q[0] + 4}, 0
    v_mov_b32 v{Q[0] + 5}, 0
    v_mov_b32 v{Q[1] + 4}, 0
    v_mov_b32 v{Q[1] + 5}, 0
    s_mul_i32 s{sDM}, s{sWV}, {DPW * 1024}
    s_add_u32 s{sKO}, s{sDM}, {STAGE}
    s_xor_b32 s{sKO}, s{sKO}, s{sDM}
    s_add_u32 s{sDS}, s{sKV}, s{sDM}
    s_add_u32 s{sDS}, s{sDS}, 2560
    s_lshl_b32 s{sT3}, s{sT3}, 9
    s_add_u32 s{sT3}, s{sT3}, {WS_NK}
    v_lshlrev_b32 v{vT + 3}, 3, v{vLANE}
    v_mov_b32 v{S[0] + 2}, 0
    v_mov_b32 v{S[0] + 3}, 0
    s_lshl_b32 s{sT1}, s{sQT}, 7
    s_waitcnt lgkmcnt(0)
    """)
    srd(a, S_WS, 4, 5, WS_BYTES)
    a(f"""
    buffer_load_dwordx2 {vr(S[0], 2)}, v{vT + 3}, {sr(S_WS, 4)}, s{sT3} offen
    s_cmp_eq_u32 s{sBR}, 0
    s_cbranch_scc1 L_k2_non2
    buffer_load_dwordx2 {vr(S[0] + 2, 2)}, v{vT + 3}, {sr(S_WS, 4)}, s{sT3} offen offset:512
    L_k2_non2:
    buffer_load_dwordx4 {vr(Q[0], 4)}, v{vDMA}, {sr(S_WS, 4)}, s{sQ0} offen
    buffer_load_dwordx4 {vr(F[1], 4)}, v{vDMA}, {sr(S_WS, 4)}, s{sKV} offen
    buffer_load_dwordx2 {vr(F[1] + 4, 2)}, v{vT + 1}, {sr(S_WS, 4)}, s{sKV} offen
    s_mov_b64 exec, {sr(sLO, 2)}
    buffer_load_dwordx2 {vr(Q[0] + 4, 2)}, v{vT + 1}, {sr(S_WS, 4)}, s{sQ0} offen
    buffer_load_dwordx2 {vr(Q[1] + 4, 2)}, v{vT + 1}, {sr(S_WS, 4)}, s{sQ1} offen
    s_mov_b64 exec, -1
    buffer_load_dwordx4 {vr(Q[1], 4)}, v{vDMA}, {sr(S_WS, 4)}, s{sQ1} offen
    """)
    dma_stage(a)
    a(f"""
    s_lshl_b32 s{sT0}, s{sBR}, 13
    s_add_u32 s{sT0}, s{sT0}, s{sT1}
    s_add_u32 s{sT0}, s{sT0}, {WS_G}
    buffer_load_dword v{vG}, v{vT + 2}, {sr(S_WS, 4)}, s{sT0} offen
    buffer_load_dword v{vG + 1}, v{vT + 2}, {sr(S_WS, 4)}, s{sT0} offen offset:128
    """)
    dma_stage(a)
    NAFTER = 2 * DPW + 2
    a.c("LDS read addresses, constants")
    a(f"""
    v_lshlrev_b32 v{vK0A}, 4, v{vLANE}
    v_mov_b32 v{vK1A}, v{vT + 1}
    v_lshrrev_b32 v{vT + 3}, 5, v{vLANE}
    v_mul_u32_u24 v{vT + 3}, 320, v{vT + 3}
    v_lshlrev_b32 v{vVA}, 4, v{vT}
    v_add3_u32 v{vVA}, v{vVA}, v{vT + 3}, 0
    v_add_u32 v{vVA}, 1280, v{vVA}
    s_mov_b32 s{sDELTA}, {STAGE}
    s_mov_b32 s{sST}, 0
    v_cmp_eq_u32 vcc, 20, v{vT}
    v_mov_b32 v{vT + 3}, 0x3f803f80
    s_nop 0
    v_cndmask_b32 v{vT + 3}, 0, v{vT + 3}, vcc
    """)
    for fs in range(2):
        for r in range(8):
            a(f"v_mov_b32 v{F[fs] + 8 + r}, v{vT + 3}")
    for r in range(8):
        a(f"v_mov_b32 v{P[1] + r}, 0")
    for u in range(2):
        for r in range(16):
            a(f"v_mov_b32 v{O[u] + r}, 0")
    a.c("output-projection setup: tile ids, weight SRD, weight DMA offsets")
    a(f"""
    s_lshl_b32 s{sT0}, s{sPART}, 3
    s_add_u32 s{sRB}, s{sRB}, s{sT0}
    s_lshl_b32 s{sCB}, s{sBR}, 2
    s_add_u32 s{sCB}, s{sCB}, s{sSH}
    s_mul_i32 s{sT2}, s{sCB}, 160
    s_bitcmp1_b32 s{sWV}, 1
    s_cselect_b32 s{S_W}, s40, s6
    s_cselect_b32 s{S_W + 1}, s41, s7
    s_and_b32 s{S_W + 1}, s{S_W + 1}, 0xffff
    s_mov_b32 s{S_W + 2}, {640 * 1280}
    s_mov_b32 s{S_W + 3}, 0x00020000
    s_and_b32 s{sT0}, s{sWV}, 1
    s_mul_i32 s{sT0}, s{sT0}, 320
    s_lshr_b32 s{sT1}, s{sWV}, 2
    s_mul_i32 s{sT1}, s{sT1}, 40
    s_add_u32 s{sT0}, s{sT0}, s{sT1}
    s_mul_i32 s{sWK}, s{sT0}, 1280
    s_mul_i32 s{sWM}, s{sWV}, 5120
    s_add_u32 s{sWM}, s{sWM}, {WREG}
    """)
    w_offsets(a, S[1])
    a.c("row-max stand-in m = |q| * max|k|")
    a(f"""
    s_waitcnt vmcnt({NAFTER + 6})
    v_max_f32 v{vT + 3}, v{S[0]}, v{S[0] + 1}
    v_max_f32 v{vT + 5}, v{S[0] + 2}, v{S[0] + 3}
    """)
    for k in (8, 4, 2, 1):
        a("s_nop 0")
        a(f"v_max_f32_dpp v{vT + 3}, v{vT + 3}, v{vT + 3} row_ror:{k} row_mask:0xf bank_mask:0xf")
        a(f"v_max_f32_dpp v{vT + 5}, v{vT + 5}, v{vT + 5} row_ror:{k} row_mask:0xf bank_mask:0xf")
    a(f"""
    v_mov_b32 v{vT + 4}, v{vT + 3}
    v_mov_b32 v{S[0]}, v{vT + 5}
    s_nop 1
    v_permlane16_swap_b32 v{vT + 3}, v{vT + 4}
    v_permlane16_swap_b32 v{vT + 5}, v{S[0]}
    v_max_f32 v{vT + 3}, v{vT + 3}, v{vT + 4}
    v_max_f32 v{vT + 5}, v{vT + 5}, v{S[0]}
    v_mov_b32 v{vT + 4}, v{vT + 3}
    v_mov_b32 v{S[0]}, v{vT + 5}
    s_nop 1
    v_permlane32_swap_b32 v{vT + 3}, v{vT + 4}
    v_permlane32_swap_b32 v{vT + 5}, v{S[0]}
    v_max_f32 v{vT + 3}, v{vT + 3}, v{vT + 4}
    v_max_f32 v{vT + 5}, v{vT + 5}, v{S[0]}
    v_add_f32 v{vT + 3}, v{vT + 3}, v{vT + 5}
    s_waitcnt vmcnt({NAFTER})
    """)
    for r in range(6):
        for u in range(2):
            a(f"v_dot2_f32_bf16 v{vQN + u}, v{Q[u] + r}, v{Q[u] + r}, " + ("0" if r == 0 else f"v{vQN + u}"))
    a(f"""
    s_nop 2
    v_mov_b32 v{S[0]}, v{vQN}
    v_mov_b32 v{S[0] + 1}, v{vQN + 1}
    s_nop 1
    v_permlane32_swap_b32 v{S[0]}, v{vQN}
    v_permlane32_swap_b32 v{S[0] + 1}, v{vQN + 1}
    v_add_f32 v{vQN}, v{vQN}, v{S[0]}
    v_add_f32 v{vQN + 1}, v{vQN + 1}, v{S[0] + 1}
    v_mul_f32 v{vQN}, v{vQN}, v{vT + 3}
    v_mul_f32 v{vQN + 1}, v{vQN + 1}, v{vT + 3}
    v_sqrt_f32 v{vQN}, v{vQN}
    v_sqrt_f32 v{vQN + 1}, v{vQN + 1}
    s_nop 0
    """)
    for u in range(2):
        for r in range(16):
            a(f"v_sub_f32 v{M[u] + r}, 0, v{vQN + u}")
    for ln in qk(0, 1):
        a(ln)
    stamp(a, 1)
    a(f"s_waitcnt vmcnt({DPW + 2})")
    a("s_barrier")
    stamp(a, 2)
    for grp in freads(0, 0):
        for ln in grp:
            a(ln)
    PR = os.environ.get('K2PRIO', '')
    if PR:
        a(f"""
        s_cmp_{'ge' if PR == 'hi' else 'lt'}_u32 s{sWV}, 4
        s_cbranch_scc0 L_k2_noprio
        s_setprio 1
        L_k2_noprio:
        """)
    a("s_nop 7")
    a(".p2align 6")
    a("L_k2_stage:")
    for tt in range(TPS):
        fprev, fcur = (tt + 1) % 2, tt % 2
        slot(a, 0, 1, fprev, [])
        if tt < TPS - 1:
            a("s_waitcnt lgkmcnt(0)")
            slot(a, 1, 0, fcur, freads(fprev, (tt + 1) * 2560))
        else:
            a("s_waitcnt vmcnt(0) lgkmcnt(0)")
            a("s_barrier")
            a(f"""
            v_add_u32 v{vK0A}, s{sDELTA}, v{vK0A}
            v_add_u32 v{vK1A}, s{sDELTA}, v{vK1A}
            v_add_u32 v{vVA}, s{sDELTA}, v{vVA}
            s_sub_u32 s{sDELTA}, 0, s{sDELTA}
            s_cmp_eq_u32 s{sST}, {NST - 1}
            s_cbranch_scc1 L_k2_nodma
            s_cmp_eq_u32 s{sST}, {NST - 2}
            s_cbranch_scc1 L_k2_nokv
            """)
            dma_stage(a)
            a("L_k2_nokv:")
            dma_w(a, vW, sWM)
            a(f"""
            s_add_u32 s{sWK}, s{sWK}, {80 * 1280}
            s_add_u32 s{sWM}, s{sWM}, {STAGE}
            s_cmp_ge_u32 s{sWM}, {LDS_BYTES}
            s_cselect_b32 s{sT0}, {LDS_BYTES}, 0
            s_sub_u32 s{sWM}, s{sWM}, s{sT0}
            L_k2_nodma:
            """)
            slot(a, 1, 0, fcur, freads(fprev, 0))
    a(f"""
    s_add_u32 s{sST}, s{sST}, 1
    s_cmp_lt_u32 s{sST}, {NST}
    s_cbranch_scc1 L_k2_stage
    s_nop 1
    """)
    for ln in pv(1, (TPS - 1) % 2):
        a(ln)
    a.c("O store addresses (fills the MFMA shadow)")
    a(f"""
    s_lshr_b32 s{sT0}, s{sQH}, 4
    s_mul_i32 s{sT0}, s{sT0}, 10
    s_and_b32 s{sT1}, s{sQH}, 15
    s_lshr_b32 s{sT2}, s{sT1}, 1
    s_add_u32 s{sT2}, s{sT2}, s{sT0}
    s_lshl_b32 s{sT2}, s{sT2}, 10
    s_and_b32 s{sT3}, s{sT1}, 1
    s_lshl_b32 s{sT3}, s{sT3}, 9
    s_add_u32 s{sT2}, s{sT2}, s{sT3}
    s_lshr_b32 s{sT3}, s{sT1}, 3
    s_add_u32 s{sT0}, s{sT0}, s{sT3}
    s_add_u32 s{sT0}, s{sT0}, 8
    s_lshl_b32 s{sT0}, s{sT0}, 10
    s_bfe_u32 s{sT3}, s{sT1}, 0x20001
    s_lshl_b32 s{sT3}, s{sT3}, 8
    s_add_u32 s{sT0}, s{sT0}, s{sT3}
    s_and_b32 s{sT3}, s{sT1}, 1
    s_lshl_b32 s{sT3}, s{sT3}, 3
    s_add_u32 s{sT0}, s{sT0}, s{sT3}
    s_mul_i32 s{sT1}, s{sQT}, {2 * 40960}
    s_add_u32 s{sT1}, s{sT1}, {WS_O}
    s_add_u32 s{sO0}, s{sT2}, s{sT1}
    s_add_u32 s{sO0 + 1}, s{sO0}, {2 * 40960}
    s_add_u32 s{sO1}, s{sT0}, s{sT1}
    s_add_u32 s{sO1 + 1}, s{sO1}, {2 * 40960}
    v_lshrrev_b32 v{vT + 5}, 4, v{vT}
    v_mul_u32_u24 v{vT + 5}, 40960, v{vT + 5}
    v_and_b32 v{vT + 4}, 15, v{vLANE}
    v_lshl_add_u32 v{vT + 5}, v{vT + 4}, 4, v{vT + 5}
    v_lshrrev_b32 v{vT + 4}, 5, v{vLANE}
    v_lshl_add_u32 v{vT + 5}, v{vT + 4}, 8, v{vT + 5}
    s_waitcnt lgkmcnt(0)
    """)
    stamp(a, 3)
    a("L_k2_epi:")
    a.c("l = row 20 -> reg 8 of lanes 32..63 ; run-time check of the stand-in")
    for u in range(2):
        a(f"""
        v_mov_b32 v{vT + 3 + u}, v{O[u] + 8}
        v_mov_b32 v{S[0] + u}, v{O[u] + 8}
        """)
    a("s_nop 1")
    for u in range(2):
        a(f"v_permlane32_swap_b32 v{vT + 3 + u}, v{S[0] + u}")
    a(f"""
    v_min_f32 v{vT + 3}, v{S[0]}, v{S[0] + 1}
    s_mov_b32 s{sT0}, {f2h(THR)}
    v_cmp_nle_f32 vcc, s{sT0}, v{vT + 3}
    v_cmp_u_f32 s[34:35], v{S[0]}, v{S[0] + 1}
    s_or_b64 vcc, vcc, s[34:35]
    s_cmp_eq_u64 vcc, 0
    s_cbranch_scc1 L_k2_out
    s_cmp_eq_u32 s{sRETRY}, 0
    s_cbranch_scc1 L_k2_slow
    L_k2_out:
    """)
    for u in range(2):
        o = O[u]
        a(f"""
        v_rcp_f32 v{S[0] + u}, v{S[0] + u}
        s_nop 0
        v_mul_f32 v{S[0] + u}, v{S[0] + u}, v{vG + u}
        """)
        for r in range(12):
            a(f"v_mul_f32 v{o + r}, v{o + r}, v{S[0] + u}")
        a(f"""
        v_cvt_pk_bf16_f32 v{o}, v{o}, v{o + 1}
        v_cvt_pk_bf16_f32 v{o + 1}, v{o + 2}, v{o + 3}
        v_cvt_pk_bf16_f32 v{o + 2}, v{o + 4}, v{o + 5}
        v_cvt_pk_bf16_f32 v{o + 3}, v{o + 6}, v{o + 7}
        v_cvt_pk_bf16_f32 v{o + 4}, v{o + 8}, v{o + 9}
        v_cvt_pk_bf16_f32 v{o + 5}, v{o + 10}, v{o + 11}
        s_nop 0
        v_permlane32_swap_b32 v{o}, v{o + 2}
        v_permlane32_swap_b32 v{o + 1}, v{o + 3}
        buffer_store_dwordx4 {vr(o, 4)}, v{vT + 5}, {sr(S_WS, 4)}, s{sO0 + u} offen sc1
        s_mov_b64 exec, {sr(sLO, 2)}
        buffer_store_dwordx2 {vr(o + 4, 2)}, v{vT + 5}, {sr(S_WS, 4)}, s{sO1 + u} offen sc1
        s_mov_b64 exec, -1
        """)
    a.c("pre-read weight fragments of k-steps 0,1; set up output projection")
    a(f"""
    v_and_b32 v{vT}, 15, v{vLANE}
    v_lshrrev_b32 v{vT + 1}, 4, v{vLANE}
    v_lshrrev_b32 v{vT + 2}, 2, v{vT}
    v_lshl_add_u32 v{vT + 2}, v{vT + 1}, 2, v{vT + 2}
    v_mul_u32_u24 v{vT + 2}, 160, v{vT + 2}
    v_and_b32 v{vT + 3}, 3, v{vLANE}
    v_lshlrev_b32 v{vT + 3}, 3, v{vT + 3}
    s_and_b32 s{sT3}, s{sWV}, 3
    s_mul_i32 s{sT0}, s{sT3}, 5120
    v_add3_u32 v{vBlo}, v{vT + 2}, v{vT + 3}, s{sT0}
    v_add_u32 v{vBhi}, {WREG}, v{vBlo}
    """)
    for ln in breads(0, 0):
        a(ln)
    a("s_waitcnt lgkmcnt(4)")
    for ln in breads(1, 1):
        a(ln)
    for r in range(40):
        a(f"v_mov_b32 v{ACC + r}, 0")
    a(f"""
    s_lshr_b32 s{sT1}, s{sWV}, 2
    s_lshl_b32 s{sT0}, s{sRB}, 2
    s_lshl_b32 s{sT2}, s{sT1}, 1
    s_add_u32 s{sT0}, s{sT0}, s{sT2}
    s_mul_i32 s{sT0}, s{sT0}, 40960
    s_mul_i32 s{sT2}, s{sT3}, 10240
    s_add_u32 s{sT0}, s{sT0}, s{sT2}
    s_add_u32 s{sA}, s{sT0}, {WS_O}
    s_add_u32 s{sA + 1}, s{sA}, 40960
    s_lshl_b32 s{sCNT}, s{sPART}, 9
    s_add_u32 s{sCNT}, s{sCNT}, {WS_CNT}
    s_waitcnt vmcnt(0) lgkmcnt(0)
    s_barrier
    s_cmp_lg_u32 s{sWV}, 0
    s_cbranch_scc1 L_k2_nosig
    s_lshl_b32 s{sT0}, s{sSH}, 7
    v_mov_b32 v{vT + 2}, s{sT0}
    v_mov_b32 v{vT + 3}, 1
    s_mov_b64 exec, 1
    buffer_atomic_add v{vT + 3}, v{vT + 2}, {sr(S_WS, 4)}, s{sCNT} offen sc1
    s_mov_b64 exec, -1
    L_k2_nosig:
    """)
    stamp(a, 4)
    dma_w(a, vW, sWM)
    a(f"""
    s_and_b32 s{sT0}, s{sWV}, 1
    s_mul_i32 s{sT0}, s{sT0}, 320
    s_mul_i32 s{sT1}, s{sT1}, 160
    s_add_u32 s{sT0}, s{sT0}, s{sT1}
    s_mul_i32 s{sWK}, s{sT0}, 1280
    s_add_u32 s{sWM}, s{sWM}, {STAGE}
    """)
    dma_w(a, vW2, sWM)
    srd(a, S_OUT, 42, 43, 2048 * 1280)
    a(f"""
    s_cmp_lg_u32 s{sWV}, 0
    s_cbranch_scc1 L_k2_polled
    v_and_b32 v{vT + 2}, 3, v{vLANE}
    v_lshlrev_b32 v{vT + 2}, 7, v{vT + 2}
    s_mov_b32 s{sT0}, {SPIN}
    L_k2_poll:
    buffer_load_dword v{vT + 3}, v{vT + 2}, {sr(S_WS, 4)}, s{sCNT} offen sc1
    s_waitcnt vmcnt(0)
    v_cmp_gt_u32 vcc, 16, v{vT + 3}
    s_cmp_eq_u64 vcc, 0
    s_cbranch_scc1 L_k2_polled
    s_sub_u32 s{sT0}, s{sT0}, 1
    s_cmp_lg_u32 s{sT0}, 0
    s_cbranch_scc1 L_k2_poll
    L_k2_polled:
    s_waitcnt vmcnt(0)
    s_barrier
    """)
    stamp(a, 5)
    for ks in range(10):
        for i in range(2):
            a(f"buffer_load_dwordx4 {vr(AF + ks * 8 + 4 * i, 4)}, v{vDMA}, {sr(S_WS, 4)}, s{sA + i} offen offset:{(ks % 4) * 1024} sc1")
        if ks % 4 == 3:
            a(f"s_add_u32 s{sA}, s{sA}, 4096")
            a(f"s_add_u32 s{sA + 1}, s{sA + 1}, 4096")
    a.c("reduction / output addresses")
    a(f"""
    s_lshr_b32 s{sT1}, s{sWV}, 2
    s_mul_i32 s{sT0}, s{sT1}, {32 * PSTR}
    s_mul_i32 s{sT2}, s{sT3}, {PQ}
    s_add_u32 s{sT0}, s{sT0}, s{sT2}
    v_mul_u32_u24 v{vT + 2}, {PSTR}, v{vT}
    v_lshlrev_b32 v{vT + 3}, 4, v{vT + 1}
    v_add3_u32 v18, v{vT + 2}, v{vT + 3}, s{sT0}
    """)
    for r in range(2):
        a(f"""
        v_add_u32 v{vT + 2}, {512 * r}, v0
        v_mul_u32_u24 v{vT + 3}, 205, v{vT + 2}
        v_lshrrev_b32 v{vT + 3}, 11, v{vT + 3}
        v_mul_u32_u24 v{vT + 4}, 10, v{vT + 3}
        v_sub_u32 v{vT + 4}, v{vT + 2}, v{vT + 4}
        v_mul_u32_u24 v{vT + 2}, {PSTR}, v{vT + 3}
        v_lshl_add_u32 v{20 + r}, v{vT + 4}, 5, v{vT + 2}
        v_mul_u32_u24 v{vT + 2}, 1280, v{vT + 3}
        v_lshl_add_u32 v{22 + r}, v{vT + 4}, 4, v{vT + 2}
        """)
    a(f"""
    s_mul_i32 s{sT0}, s{sRB}, {64 * 1280}
    s_mul_i32 s{sT1}, s{sCB}, 160
    s_add_u32 s{sO0}, s{sT0}, s{sT1}
    """)
    for ks in range(10):
        st = ks % 2
        a(f"s_waitcnt vmcnt({18 - 2 * ks}) lgkmcnt(0)")
        for ln in omfmas(ks, st):
            a(ln)
        if ks + 2 < 10:
            for ln in breads(ks + 2, st):
                a(ln)
    a("""
    s_barrier
    s_nop 5
    """)
    for i in range(2):
        for jt in range(5):
            a(f"ds_write_b128 v18, {vr(ACC + (i * 5 + jt) * 4, 4)} offset:{i * 16 * PSTR + jt * 64}")
    a("""
    s_waitcnt lgkmcnt(0)
    s_barrier
    """)
    for r in range(2):
        if r == 1:
            a(f"""
            s_cmp_ge_u32 s{sWV}, 2
            s_cbranch_scc1 L_k2_fin
            """)
        for q in range(4):
            a(f"ds_read_b128 {vr(AF + 8 * q, 4)}, v{20 + r} offset:{q * PQ}")
            a(f"ds_read_b128 {vr(AF + 8 * q + 4, 4)}, v{20 + r} offset:{q * PQ + 16}")
        for q in range(1, 4):
            a(f"s_waitcnt lgkmcnt({6 - 2 * q})")
            for e in range(8):
                a(f"v_add_f32 v{AF + e}, v{AF + e}, v{AF + 8 * q + e}")
        d = AF + 32 + 4 * r
        for e in range(4):
            a(f"v_cvt_pk_bf16_f32 v{d + e}, v{AF + 2 * e}, v{AF + 2 * e + 1}")
        a(f"buffer_store_dwordx4 {vr(d, 4)}, v{22 + r}, {sr(S_OUT, 4)}, s{sO0} offen")
    a("L_k2_fin:")
    prof_store(a, 1, S_WS, sWV, 0, keep5=True)
    dbgt_end(a, 1, sWV)
    a("""
    L_k2_done:
    s_endpgm
    """)
    a.c("---- slow path (wave local): exact row max, then plain two-pass softmax from global memory ----")
    a(f"""
    L_k2_slow:
    s_mov_b32 s{sRETRY}, 1
    v_lshrrev_b32 v{vT + 3}, 5, v{vLANE}
    v_mul_u32_u24 v{vT + 3}, 320, v{vT + 3}
    v_lshl_add_u32 v{vVA}, v{vT}, 4, v{vT + 3}
    """)
    for u in range(2):
        for r in range(16):
            a(f"v_mov_b32 v{M[u] + r}, 0")
            a(f"v_mov_b32 v{O[u] + r}, 0")
        a(f"v_mov_b32 v{vQN + u}, 0xff800000")
    a(f"""
    s_mov_b32 s{sST}, 0
    s_mov_b32 s{sT3}, s{sKV}
    L_k2_maxloop:
    buffer_load_dwordx4 {vr(F[0], 4)}, v{vDMA}, {sr(S_WS, 4)}, s{sT3} offen
    buffer_load_dwordx2 {vr(F[0] + 4, 2)}, v{vT + 1}, {sr(S_WS, 4)}, s{sT3} offen
    s_waitcnt vmcnt(0)
    """)
    for ln in qk(0, 0) + qk(1, 0):
        a(ln)
    a("s_nop 7")
    a("s_nop 7")
    for u in range(2):
        for i in range(0, 16, 2):
            a(f"v_max3_f32 v{vQN + u}, v{S[u] + i}, v{S[u] + i + 1}, v{vQN + u}")
    a(f"""
    s_add_u32 s{sT3}, s{sT3}, 2560
    s_add_u32 s{sST}, s{sST}, 1
    s_cmp_lt_u32 s{sST}, 64
    s_cbranch_scc1 L_k2_maxloop
    """)
    for u in range(2):
        a(f"""
        v_mov_b32 v{vT + 3}, v{vQN + u}
        s_nop 1
        v_permlane32_swap_b32 v{vT + 3}, v{vQN + u}
        v_max_f32 v{vQN + u}, v{vQN + u}, v{vT + 3}
        """)
        for r in range(16):
            a(f"v_sub_f32 v{M[u] + r}, 0, v{vQN + u}")
    a(f"""
    s_mov_b32 s{sST}, 0
    s_mov_b32 s{sT3}, s{sKV}
    L_k2_slowloop:
    buffer_load_dwordx4 {vr(F[0], 4)}, v{vDMA}, {sr(S_WS, 4)}, s{sT3} offen
    buffer_load_dwordx2 {vr(F[0] + 4, 2)}, v{vT + 1}, {sr(S_WS, 4)}, s{sT3} offen
    s_add_u32 s{sT3}, s{sT3}, 2560
    s_mov_b64 exec, {sr(sVM, 2)}
    buffer_load_dwordx4 {vr(F[0] + 8, 4)}, v{vVA}, {sr(S_WS, 4)}, s{sT3} offen offset:1280
    buffer_load_dwordx4 {vr(F[0] + 12, 4)}, v{vVA}, {sr(S_WS, 4)}, s{sT3} offen offset:1920
    s_mov_b64 exec, -1
    s_waitcnt vmcnt(0)
    """)
    for ln in qk(0, 0) + qk(1, 0):
        a(ln)
    a("s_nop 7")
    a("s_nop 7")
    for u in range(2):
        for j in range(4):
            expcvt(a, u, j)
    a("s_nop 1")
    for ln in pv(0, 0) + pv(1, 0):
        a(ln)
    a(f"""
    s_add_u32 s{sST}, s{sST}, 1
    s_cmp_lt_u32 s{sST}, 64
    s_cbranch_scc1 L_k2_slowloop
    s_nop 7
    s_nop 7
    s_branch L_k2_epi
    L_code_end:
    """)


def desc(a):
    kernel_desc(a, NAME, NV, NS, NV)
```
